```python
import torch

def _softmax(x, axis=-1):
    return torch.softmax(x, dim=axis)

def _gelu(x):
    return torch.nn.functional.gelu(x, approximate='tanh')

def _silu(x):
    return torch.nn.functional.silu(x)

def _sigmoid(x):
    return torch.sigmoid(x)

def _layernorm(x, axis=-1, eps=1e-05):
    m = x.mean(dim=axis, keepdim=True)
    v = x.var(dim=axis, keepdim=True, unbiased=False)
    return (x - m) / torch.sqrt(v + eps)

def _scatter_add(tgt, idx, src, axis=0):
    return tgt.clone().index_add_(axis, idx, src)

def _segment_sum(src, seg, n):
    out = torch.zeros((n,) + src.shape[1:], dtype=src.dtype)
    return out.index_add_(0, seg, src)

def _pad(x, pw):
    flat = tuple((v for pair in reversed(pw) for v in pair))
    return torch.nn.functional.pad(x, flat)
kernel_name = 'sequential_preLN__memory_aug_recurrent_mem_tr__mixer_s_mlp__prompt'

def setup_inputs():

    _w = lambda a: (lambda t: t.to(torch.bfloat16) if t.is_floating_point() else t)(torch.as_tensor(a))

    def _A_setup():
        B, S, Dm = (1, 2048, 576)
        H, Dh = (32, 128)
        M, seg = (8, 32)
        seg = min(seg, S)
        S = S // seg * seg
        return {'x': _w((lambda *s: torch.randn(*s, dtype=torch.bfloat16) * 0.05)(B, S, Dm)), 'mem0': _w((lambda *s: torch.randn(*s, dtype=torch.bfloat16) * 0.2)(B, M, Dm)), 'Wq': _w((lambda *s: torch.randn(*s, dtype=torch.bfloat16) * 1.6)(Dm, H, Dh) * Dm ** (-0.5)), 'Wk': _w((lambda *s: torch.randn(*s, dtype=torch.bfloat16) * 1.6)(Dm, H, Dh) * Dm ** (-0.5)), 'Wv': _w((lambda *s: torch.randn(*s, dtype=torch.bfloat16) * 0.2)(Dm, H, Dh) * Dm ** (-0.5)), 'Wo': _w((lambda *s: torch.randn(*s, dtype=torch.bfloat16) * 0.2)(H, Dh, Dm) * (H * Dh) ** (-0.5)), 'seg_len': seg}
    _A_in = _A_setup()

    def _B_setup():
        B, S, D, F = (1, 2048, 576, 4608)
        return {'x': _w((lambda *s: torch.randn(*s, dtype=torch.bfloat16) * 0.05)(B, S, D)), 'w1': _w((lambda *s: torch.randn(*s, dtype=torch.bfloat16) * 0.8)(D, D) * D ** (-0.5)), 'w2': _w((lambda *s: torch.randn(*s, dtype=torch.bfloat16) * 0.8)(D, D) * D ** (-0.5)), 'w3': _w((lambda *s: torch.randn(*s, dtype=torch.bfloat16) * 0.8)(D, F) * D ** (-0.5)), 'w4': _w((lambda *s: torch.randn(*s, dtype=torch.bfloat16) * 0.8)(F, D) * F ** (-0.5))}
    _B_in = _B_setup()
    return {'A_x': _A_in['x'], 'A_mem0': _A_in['mem0'], 'A_Wq': _A_in['Wq'], 'A_Wk': _A_in['Wk'], 'A_Wv': _A_in['Wv'], 'A_Wo': _A_in['Wo'], 'A_seg_len': _A_in['seg_len'], 'B_x': _B_in['x'], 'B_w1': _B_in['w1'], 'B_w2': _B_in['w2'], 'B_w3': _B_in['w3'], 'B_w4': _B_in['w4']}

def reference(A_x, A_mem0, A_Wq, A_Wk, A_Wv, A_Wo, A_seg_len, B_x, B_w1, B_w2, B_w3, B_w4):

    def _A_ref(x, mem0, Wq, Wk, Wv, Wo, seg_len):
        B, S, Dm = x.shape
        H, Dh = (Wq.shape[1], Wq.shape[2])
        M = mem0.shape[1]
        scale = Dh ** (-0.5)
        n_seg = S // seg_len
        L = M + seg_len
        idx = torch.arange(L)
        mask = (idx[:, None] < M) | (idx[:, None] >= idx[None, :])
        mem = mem0
        outs = []
        for s in range(n_seg):
            xs = x[:, s * seg_len:(s + 1) * seg_len, :].clone()
            h = torch.concatenate([mem, xs], axis=1)
            q = torch.einsum('btd,dhe->bhte', h, Wq)
            k = torch.einsum('btd,dhe->bhte', h, Wk)
            v = torch.einsum('btd,dhe->bhte', h, Wv)
            scores = torch.einsum('bhqe,bhke->bhqk', q, k) * scale
            scores = torch.where(mask[None, None], scores, -1000000000.0)
            p = _softmax(scores, axis=-1)
            o = torch.einsum('bhqk,bhke->bhqe', p, v)
            o = torch.einsum('bhte,hed->btd', o, Wo)
            mem = o[:, :M, :].clone()
            outs.append(o[:, M:, :])
        return torch.concatenate(outs, axis=1)

    def _B_ref(x, w1, w2, w3, w4):
        B, S, D = x.shape
        h = _gelu(_layernorm(x, axis=-1) @ w1)
        c = D // 4
        g0 = _pad(h[:, :, 0 * c:1 * c], ((0, 0), (1, 0), (0, 0)))[:, :S, :]
        g1 = _pad(h[:, :, 1 * c:2 * c], ((0, 0), (0, 1), (0, 0)))[:, 1:, :]
        g2 = _pad(h[:, :, 2 * c:3 * c], ((0, 0), (2, 0), (0, 0)))[:, :S, :]
        g3 = _pad(h[:, :, 3 * c:], ((0, 0), (0, 2), (0, 0)))[:, 2:, :]
        hs = torch.concatenate([g0, g1, g2, g3], axis=-1) @ w2
        x1 = x + hs
        h2 = _gelu(_layernorm(x1, axis=-1) @ w3) @ w4
        return x1 + h2
    x = A_x
    h = x + _A_ref(_layernorm(x, axis=-1), A_mem0, A_Wq, A_Wk, A_Wv, A_Wo, A_seg_len)
    h2 = h + _B_ref(_layernorm(h, axis=-1), B_w1, B_w2, B_w3, B_w4)
    return h2
```

```python
import re

REG_RE = re.compile(r"^(-|abs\()?([vas])(\d+|\[(\d+):(\d+)\])\)?$")

def parse_reg(tok):
    t = tok.strip()
    if t in ("vcc",):
        return ("s", 106, 107)
    if t == "vcc_lo": return ("s", 106, 106)
    if t == "vcc_hi": return ("s", 107, 107)
    if t == "exec": return ("s", 126, 127)
    if t == "exec_lo": return ("s", 126, 126)
    if t == "exec_hi": return ("s", 127, 127)
    if t == "m0": return ("s", 124, 124)
    t2 = t
    if t2.startswith("-"): t2 = t2[1:]
    if t2.startswith("abs(") and t2.endswith(")"): t2 = t2[4:-1]
    if t2.startswith("|") and t2.endswith("|"): t2 = t2[1:-1]
    m = re.match(r"^([vas])(\d+)$", t2)
    if m: return (m.group(1), int(m.group(2)), int(m.group(2)))
    m = re.match(r"^([vas])\[(\d+):(\d+)\]$", t2)
    if m: return (m.group(1), int(m.group(2)), int(m.group(3)))
    return None

TRANS = ("v_exp_f32", "v_log_f32", "v_rcp_f32", "v_rsq_f32", "v_sqrt_f32", "v_sin_f32", "v_cos_f32", "v_rcp_iflag_f32")

def mfma_passes(mn):
    if "32x32x16" in mn or "32x32x8" in mn or "32x32x32" in mn: return 8
    if "16x16x32" in mn or "16x16x16" in mn or "16x16x64" in mn: return 4
    raise ValueError(mn)

class Ins:
    __slots__ = ("text", "mn", "ops", "kind", "dst", "src", "passes", "srcC", "isdpp", "label", "target", "comment")
    def __init__(self, text):
        self.text = text
        self.label = None; self.target = None
        self.dst = []; self.src = []; self.srcC = None; self.passes = 0; self.isdpp = False
        s = text.split(";")[0].strip()
        if s.endswith(":"):
            self.kind = "label"; self.label = s[:-1]; self.mn = ""; self.ops = []; return
        if s == "" or s.startswith("."):
            self.kind = "dir"; self.mn = ""; self.ops = []; return
        parts = s.split(None, 1)
        mn = parts[0]; self.mn = mn
        rest = parts[1] if len(parts) > 1 else ""
        ops = [o.strip() for o in re.split(r",(?![^\[]*\])", rest)] if rest else []
        mods = []
        if ops:
            lp = ops[-1].split()
            ops[-1] = lp[0] if lp else ""
            mods = lp[1:]
        self.ops = ops
        R = [parse_reg(o) for o in ops]
        base = mn.replace("_e32", "").replace("_e64", "").replace("_dpp", "").replace("_sdwa", "")
        if mn.startswith("v_mfma"):
            self.kind = "mfma"; self.passes = mfma_passes(mn)
            self.dst = [R[0]]; self.src = [r for r in R[1:3] if r]; self.srcC = R[3] if len(R) > 3 else None
        elif mn.startswith("v_smfmac"):
            self.kind = "mfma"; self.passes = mfma_passes(mn)
            self.dst = [R[0]]; self.src = [r for r in R[1:4] if r]; self.srcC = R[0]
        elif mn.startswith("v_"):
            self.kind = "valu"
            if "dpp" in mn or any(m.startswith(("row_", "quad_perm", "wave_", "row_bcast")) for m in mods): self.isdpp = True
            if base.startswith("v_cmp"):
                self.dst = [R[0]]; self.src = [r for r in R[1:] if r]
            elif base.startswith("v_permlane") and "swap" in base:
                self.dst = [R[0], R[1]]; self.src = [R[0], R[1]]
            elif base in ("v_readfirstlane_b32", "v_readlane_b32"):
                self.dst = [R[0]]; self.src = [r for r in R[1:] if r]
            elif base in ("v_add_co_u32", "v_sub_co_u32", "v_addc_co_u32", "v_subb_co_u32"):
                self.dst = [R[0], R[1]]; self.src = [r for r in R[2:] if r]
            elif base in ("v_fmac_f32", "v_mac_f32", "v_pk_fmac_f16", "v_dot2c_f32_bf16", "v_writelane_b32"):
                self.dst = [R[0]]; self.src = [r for r in R if r]
            elif base == "v_cndmask_b32":
                self.dst = [R[0]]; self.src = [r for r in R[1:] if r]
                if len(ops) == 3: self.src.append(("s", 106, 107))
            elif base == "v_nop":
                pass
            else:
                self.dst = [R[0]]; self.src = [r for r in R[1:] if r]
            if self.isdpp: self.src.append(R[0])
        elif mn.startswith("ds_"):
            self.kind = "ds"
            if mn.startswith(("ds_read", "ds_bpermute", "ds_permute", "ds_swizzle")):
                self.dst = [R[0]]; self.src = [r for r in R[1:] if r]
            else:
                self.src = [r for r in R if r]
        elif mn.startswith(("buffer_", "global_")):
            self.kind = "vmem"
            islds = "lds" in mods or "_lds_" in mn or (ops and ops[-1] == "lds")
            if mn.startswith(("buffer_inv", "buffer_wbl2")):
                pass
            elif "load" in mn and not islds:
                self.dst = [R[0]]; self.src = [r for r in R[1:] if r]
            elif "load" in mn:
                self.src = [r for r in R if r] + [("s", 124, 124)]
                self.kind = "vmem_lds"
            elif "atomic" in mn:
                self.src = [r for r in R if r]
                if "sc0" in mods:
                    self.dst = [R[0]]
            else:
                self.src = [r for r in R if r]
        elif mn.startswith("s_"):
            self.kind = "salu"
            if mn.startswith(("s_cbranch", "s_branch")):
                self.kind = "branch"; self.target = ops[0]
            elif mn in ("s_nop", "s_waitcnt", "s_barrier", "s_endpgm", "s_setprio", "s_sleep", "s_sethalt"):
                self.kind = "sctl"
            elif mn.startswith("s_cmp"):
                self.src = [r for r in R if r]
            elif mn.startswith(("s_load", "s_memtime", "s_memrealtime", "s_getreg")):
                self.dst = [R[0]] if R and R[0] else []; self.src = [r for r in R[1:] if r]
            else:
                self.dst = [R[0]] if R and R[0] else []; self.src = [r for r in R[1:] if r]
        else:
            raise ValueError("unknown instruction: " + text)
        self.dst = [d for d in self.dst if d]

def overlap(a, b):
    return a[0] == b[0] and a[1] <= b[2] and b[1] <= a[2]

def wait_states_of(ins):
    if ins.kind in ("label", "dir"): return 0
    if ins.mn == "s_nop": return int(ins.ops[0], 0) + 1
    return 1

MF_D_AB = {2: 5, 4: 8, 8: 12, 16: 20}
MF_D_VALU = {2: 5, 4: 8, 8: 12, 16: 20}
MF_D_COVL = {2: 4, 4: 6, 8: 10, 16: 18}
MF_C_WAR = {2: 1, 4: 3, 8: 7, 16: 15}

def need(prod, cons):
    n = 0
    pk, ck = prod.kind, cons.kind
    if pk == "valu":
        vd = [d for d in prod.dst if d[0] in "va"]
        sd = [d for d in prod.dst if d[0] == "s"]
        if ck == "mfma":
            rd = list(cons.src) + ([cons.srcC] if cons.srcC else [])
            if any(overlap(d, r) for d in vd for r in rd): n = max(n, 2)
        if ck == "valu":
            if cons.isdpp or ("permlane" in cons.mn):
                if any(overlap(d, r) for d in vd for r in cons.src): n = max(n, 2)
            if cons.mn.startswith(("v_readfirstlane", "v_readlane")):
                if any(overlap(d, r) for d in vd for r in cons.src): n = max(n, 1)
                if any(overlap(d, r) for d in sd for r in cons.src): n = max(n, 4)
            if prod.mn.replace("_e32", "").replace("_e64", "") in TRANS:
                if any(overlap(d, r) for d in vd for r in cons.src): n = max(n, 1)
            if any(overlap(d, r) for d in sd for r in cons.src): n = max(n, 2)
        if ck in ("vmem", "vmem_lds"):
            if any(overlap(d, r) for d in sd for r in cons.src): n = max(n, 5)
    if pk == "mfma":
        p = prod.passes
        D = prod.dst[0]
        if ck == "mfma":
            if any(overlap(D, r) for r in cons.src): n = max(n, MF_D_AB[p])
            if cons.srcC and overlap(D, cons.srcC):
                if not (cons.srcC == D and cons.mn == prod.mn): n = max(n, MF_D_COVL[p])
            if overlap(D, cons.dst[0]) and not (cons.srcC == D and cons.mn == prod.mn): n = max(n, MF_D_COVL[p])
        elif ck in ("valu",):
            if any(overlap(D, r) for r in cons.src + cons.dst): n = max(n, MF_D_VALU[p])
            if prod.srcC and any(overlap(prod.srcC, r) for r in cons.dst): n = max(n, MF_C_WAR[p])
        elif ck in ("ds", "vmem", "vmem_lds"):
            if any(overlap(D, r) for r in cons.src + cons.dst): n = max(n, MF_D_VALU[p])
    if pk == "salu":
        if ck == "vmem_lds" and any(overlap(d, ("s", 124, 124)) for d in prod.dst): n = max(n, 1)
    if pk == "vmem" and ("store" in prod.mn) and prod.mn.endswith(("x3", "x4")):
        data = prod.src[0] if prod.mn.startswith("buffer") else (prod.src[1] if len(prod.src) > 1 else None)
        if data and data[0] in "va":
            if ck == "valu" and any(overlap(data, r) for r in cons.dst): n = max(n, 2)
            elif ck in ("ds", "vmem", "mfma") and any(overlap(data, r) for r in cons.dst): n = max(n, 1)
    return n

WINDOW = 22

def elapsed_states(seq, cons):
    t = 0; last_m = None
    for i, p in enumerate(seq + [cons]):
        if i > 0:
            t += wait_states_of(seq[i-1])
        if p.kind == "mfma":
            if last_m is not None: t = max(t, last_m[0] + last_m[1])
            last_m = (t, p.passes)
    return t - 1

class Asm:
    def __init__(self):
        self.lines = []
    def __call__(self, text):
        for t in text.split("\n"):
            t = t.strip()
            if t: self.lines.append(t)
        return self
    def raw(self, text):
        self.lines.append(("RAW", text))
    def label(self, name): self.lines.append(name + ":")

def fix_hazards(lines, verbose=False):
    out = []
    n_ins = 0
    for ln in lines:
        if isinstance(ln, tuple):
            out.append(ln); continue
        ins = Ins(ln)
        if ins.kind in ("label", "dir"):
            out.append(ins); continue
        win = []; dist = 0
        for p in reversed(out):
            if isinstance(p, tuple): continue
            if p.kind in ("label", "dir"): continue
            if p.mn in ("s_endpgm", "s_branch"): break
            win.append(p); dist += wait_states_of(p)
            if dist >= WINDOW: break
        win.reverse()
        req = 0
        for k, p in enumerate(win):
            nd = need(p, ins)
            if nd == 0: continue
            have = elapsed_states(win[k:], ins)
            if nd > have: req = max(req, nd - have)
        while req > 0:
            k = min(req, 16)
            out.append(Ins("s_nop %d" % (k - 1))); n_ins += k; req -= k
        out.append(ins)
    idx = {}
    for i, p in enumerate(out):
        if not isinstance(p, tuple) and p.kind == "label": idx[p.label] = i
    problems = []
    for i, p in enumerate(out):
        if isinstance(p, tuple) or p.kind != "branch": continue
        if p.target not in idx: continue
        prods = []; dist = 1
        for q in reversed(out[:i]):
            if isinstance(q, tuple) or q.kind in ("label", "dir"): continue
            if q.mn in ("s_endpgm", "s_branch"): break
            prods.append((q, dist)); dist += wait_states_of(q)
            if dist >= WINDOW: break
        d2 = 0
        for c in out[idx[p.target]:]:
            if isinstance(c, tuple) or c.kind in ("label", "dir"): continue
            for q, dq in prods:
                nd = need(q, c)
                if nd > dq + d2 - 0:
                    problems.append((p.text, q.text, c.text, nd, dq + d2))
            d2 += wait_states_of(c)
            if d2 >= WINDOW or c.mn in ("s_endpgm", "s_branch"): break
    if problems:
        for pr in problems: print("BRANCH HAZARD:", pr)
        raise SystemExit("branch hazards found")
    txt = []
    for p in out:
        if isinstance(p, tuple): txt.append(p[1])
        elif p.kind == "label": txt.append(p.text)
        else: txt.append("    " + p.text)
    if verbose: print("inserted nop states:", n_ins, "instructions:", sum(1 for p in out if not isinstance(p, tuple) and p.kind not in ("label", "dir")))
    return "\n".join(txt) + "\n"
```

```python
from common import *
import r_ln, r_proj, r_rec, r_attn, r_mlp, sys

def wrap(name, body, guard_n):
    a = Asm()
    a(f"s_cmp_ge_u32 s2, {guard_n}"); a(f"s_cbranch_scc1 {name}_end")
    body(a)
    a.label(f"{name}_end"); a("s_endpgm")
    return kernel_head(name + "_kernel") + fix_hazards(a.lines, True) + kernel_desc(name + "_kernel")

def k_zero(a):
    srd(a, 8, "ws"); a("s_waitcnt lgkmcnt(0)"); srd_fin(a, 8, "ws")
    a("v_lshlrev_b32 v1, 4, v0"); a("v_mov_b64 v[4:5], 0"); a("v_mov_b64 v[6:7], 0")
    a(f"s_mov_b32 s20, {WS_FLG}")
    for k in range(NFLAGS*128 // 4096 + 1):
        a("buffer_store_dwordx4 v[4:7], v1, s[8:11], s20 offen"); a("s_add_u32 s20, s20, 4096")
def k_ln1(a):
    srd(a, 4, "x"); srd(a, 8, "ws"); a("s_waitcnt lgkmcnt(0)"); srd_fin(a, 4, "x"); srd_fin(a, 8, "ws")
    r_ln.role_ln1(a, "ln1", "s2")
def k_proj(a):
    a("s_lshr_b32 s60, s2, 5"); a("s_and_b32 s61, s2, 31")
    srd(a, 8, "ws")
    a(f"s_load_dwordx2 s[12:13], s[0:1], {KA['wq']}"); a(f"s_load_dwordx2 s[16:17], s[0:1], {KA['wk']}"); a(f"s_load_dwordx2 s[18:19], s[0:1], {KA['wv']}")
    a("s_waitcnt lgkmcnt(0)")
    a("s_cmp_eq_u32 s60, 1"); a("s_cselect_b32 s12, s16, s12"); a("s_cselect_b32 s13, s17, s13")
    a("s_cmp_eq_u32 s60, 2"); a("s_cselect_b32 s12, s18, s12"); a("s_cselect_b32 s13, s19, s13")
    srd_fin(a, 8, "ws"); srd_fin(a, 12, "wq")
    r_proj.role_proj(a, "proj", "s60", "s61")
def k_rec(a):
    xcc_ticket(a, "rec", "s48", "s49")
    a("s_cmp_eq_u32 s48, 0"); a("s_cbranch_scc0 rec_end")
    a("s_cmp_ge_u32 s49, 32"); a("s_cbranch_scc1 rec_end")
    srd(a, 8, "ws"); srd(a, 4, "mem0")
    for i, k in enumerate(("wq", "wk", "wv", "wo")): a(f"s_load_dwordx2 s[{40+2*i}:{41+2*i}], s[0:1], {KA[k]}")
    a("s_waitcnt lgkmcnt(0)")
    srd_fin(a, 8, "ws"); srd_fin(a, 4, "mem0")
    a("v_lshrrev_b32 v2, 6, v0"); a("s_nop 0"); a("v_readfirstlane_b32 s22, v2")
    r_rec.rec_setup(a, "rec", "s49"); r_rec.rec_reset_rings(a, "rec")
    r_rec.rec_preload(a, "rec", "s49"); r_rec.rec_setup(a, "rec2", "s49"); r_rec.rec_mem0(a, "rec")
    r_rec.rec_steps(a, "rec", "s49")
def k_att(a):
    xcc_ticket(a, "att", "s78", "s79")
    a("s_sub_u32 s80, s78, 4"); a("s_cmp_gt_u32 s80, 1"); a("s_cbranch_scc1 att_end")
    a("s_cmp_ge_u32 s79, 32"); a("s_cbranch_scc1 att_end")
    srd(a, 4, "x"); srd(a, 8, "ws"); srd(a, 12, "wo"); a("s_waitcnt lgkmcnt(0)")
    srd_fin(a, 4, "x"); srd_fin(a, 8, "ws"); srd_fin(a, 12, "wo")
    r_attn.role_attn(a, "att", "s79", "s80")
def k_lnln(a):
    srd(a, 8, "ws"); a("s_waitcnt lgkmcnt(0)"); srd_fin(a, 8, "ws")
    a("s_mov_b32 s80, s2"); r_ln.role_lnln(a, "lnln", "s80")
def k_w1(a):
    srd(a, 8, "ws"); srd(a, 12, "w1"); a("s_waitcnt lgkmcnt(0)"); srd_fin(a, 8, "ws"); srd_fin(a, 12, "w1")
    a("s_mov_b32 s80, s2"); r_proj.role_w1(a, "w1", "s80")
def k_w2(a):
    srd(a, 8, "ws"); srd(a, 12, "w2"); a("s_waitcnt lgkmcnt(0)"); srd_fin(a, 8, "ws"); srd_fin(a, 12, "w2")
    a("s_mov_b32 s80, s2"); r_proj.role_w2(a, "w2", "s80")
def k_ln3(a):
    srd(a, 8, "ws"); a("s_waitcnt lgkmcnt(0)"); srd_fin(a, 8, "ws")
    a("s_mov_b32 s80, s2"); r_ln.role_ln3(a, "ln3", "s80")
def k_mlp(a):
    xcc_ticket(a, "mlp", "s78", "s79")
    a("s_sub_u32 s80, s78, 6"); a("s_cmp_gt_u32 s80, 1"); a("s_cbranch_scc1 mlp_end")
    a("s_cmp_ge_u32 s79, 24"); a("s_cbranch_scc1 mlp_end")
    srd(a, 4, "out"); srd(a, 8, "ws"); srd(a, 12, "w4"); srd(a, 16, "w3"); a("s_waitcnt lgkmcnt(0)")
    srd_fin(a, 4, "out"); srd_fin(a, 8, "ws"); srd_fin(a, 12, "w4"); srd_fin(a, 16, "w3")
    r_mlp.role_mlp(a, "mlp", "s79", "s80")

if __name__ == "__main__":
    K = [("zero", k_zero, 1, 1), ("ln1", k_ln1, 64, 64), ("proj", k_proj, 96, 96), ("rec", k_rec, 256, 256), ("att", k_att, 256, 256),
         ("lnln", k_lnln, 2, 2), ("w1", k_w1, 5, 5), ("w2", k_w2, 5, 5), ("ln3", k_ln3, 2, 2), ("mlp", k_mlp, 256, 256)]
    hdr = "".join(f"; @launch kernel={n}_kernel grid=({g},1,1) block=(256,1,1) lds=163840\n" for n, f, g, gd in K)
    hdr += '.amdgcn_target "amdgcn-amd-amdhsa--gfx950"\n.text\n'
    open(sys.argv[1], "w").write(hdr + "".join(wrap(n, f, gd) for n, f, g, gd in K))
```

```python
from asmlib import Asm, fix_hazards

NAME = "sequential_preLN__memory_aug_recurrent_mem_tr__mixer_s_mlp__prompt"

KA = dict(x=0, mem0=8, wq=16, wk=24, wv=32, wo=40, seglen=48, bx=56, w1=64, w2=72, w3=80, w4=88, out=96, dbg=104, ws=112)
SZ = dict(x=2048*576*2, mem0=8*576*2, wq=576*4096*2, wk=576*4096*2, wv=576*4096*2, wo=4096*576*2,
          w1=576*576*2, w2=576*576*2, w3=576*4608*2, w4=4608*576*2, out=2048*576*2, dbg=256, ws=268435456)

WS_XNF  = 0x0000000
WS_QB   = 0x0400000
WS_KB   = 0x1400000
WS_VB   = 0x2400000
WS_KM   = 0x3400000
WS_VM   = 0x3C00000
WS_H1   = 0x4400000
WS_H2   = 0x4500000
WS_FLG  = 0x4600000
WS_DBG  = 0x5000000

QSCALE = 0.08838834764831845 * 1.4426950408889634

import struct
def f32(x): return "0x%08x" % struct.unpack("<I", struct.pack("<f", x))[0]

def srd(a, sreg, key, tmp=None):
    a(f"s_load_dwordx2 s[{sreg}:{sreg+1}], s[0:1], {KA[key]}")
def srd_fin(a, sreg, key, size=None):
    a(f"s_and_b32 s{sreg+1}, s{sreg+1}, 0xffff")
    a(f"s_mov_b32 s{sreg+2}, {size if size is not None else SZ[key]}")
    a(f"s_mov_b32 s{sreg+3}, 0x20000")

def kernel_desc(name, vgpr=512, accum=256, sgpr=102):
    return f""".section .rodata,"a"
.p2align 6
.amdhsa_kernel {name}
  .amdhsa_next_free_vgpr {vgpr}
  .amdhsa_next_free_sgpr {sgpr}
  .amdhsa_accum_offset {accum}
  .amdhsa_group_segment_fixed_size 0
  .amdhsa_kernarg_size 120
  .amdhsa_user_sgpr_count 2
  .amdhsa_user_sgpr_kernarg_segment_ptr 1
  .amdhsa_system_sgpr_workgroup_id_x 1
.end_amdhsa_kernel
.text
"""

def kernel_head(name):
    return f""".globl {name}
.p2align 8
.type {name},@function
{name}:
"""

def xcc_ticket(a, pfx, s_xcc, s_tick, fast=()):
    a(f"""
    s_load_dwordx2 s[16:17], s[0:1], {KA['dbg']}
    s_getreg_b32 {s_xcc}, hwreg(HW_REG_XCC_ID)
    s_and_b32 {s_xcc}, {s_xcc}, 7
    s_waitcnt lgkmcnt(0)
    s_and_b32 s17, s17, 0xffff
    s_mov_b32 s18, 256
    s_mov_b32 s19, 0x20000
    v_cmp_eq_u32 vcc, 0, v0
    s_and_saveexec_b64 s[20:21], vcc
    s_cbranch_execz {pfx}_tk_skip
    v_mov_b32 v1, 1
    s_lshl_b32 s22, {s_xcc}, 2
    """)
    for x in fast:
        a(f"s_cmp_eq_u32 {s_xcc}, {x}"); a(f"s_cselect_b32 s23, 128, 0"); a("s_add_u32 s22, s22, s23")
    a(f"""
    v_mov_b32 v2, s22
    buffer_atomic_add v1, v2, s[16:19], 0 offen sc0
    s_waitcnt vmcnt(0)
    v_mov_b32 v2, 0
    ds_write_b32 v2, v1
    s_waitcnt lgkmcnt(0)
    """)
    a.label(f"{pfx}_tk_skip")
    a(f"""
    s_mov_b64 exec, s[20:21]
    s_barrier
    v_mov_b32 v2, 0
    ds_read_b32 v1, v2
    s_waitcnt lgkmcnt(0)
    v_readfirstlane_b32 {s_tick}, v1
    s_barrier
    """)

WS_P3   = 0x6000000
P3_SLOT = 32*36864
WS_HROW = 0x6800000
WS_LNH  = 0x6B00000
WS_XN2F = 0x6E00000
WS_GF   = 0x7100000
WS_X1   = 0x7400000
WS_XN3F = 0x7700000
WS_ST   = 0x7A00000
WS_P5   = 0x8000000
P5_SLOT = 24*36864
FL_Q, FL_K, FL_V, FL_KM = 0, 32, 64, 96
FL_LN1 = 128
FL_H   = 192
FL_D   = 312
FL_E   = 288
FL_F   = 298
FL_G   = 308
NGRP   = 3
FL_P3  = 320
FL_P5  = 328
NFLAGS = 336
def FLG(i): return WS_FLG + 128*i

class Cnt:
    def __init__(self, a, name, cap):
        self.a = a; self.name = name; self.cap = cap; self.n = 0; self.done = 0
    def reset(self): self.n = 0; self.done = 0
    def issue(self, text):
        self.a(text); self.n += 1; return self.n
    def wait(self, tok):
        if tok <= self.done: return
        k = min(self.n - tok, self.cap)
        self.a(f"s_waitcnt {self.name}({k})")
        self.done = self.n - k
    def drain(self):
        if self.done == self.n: return
        self.a(f"s_waitcnt {self.name}(0)"); self.done = self.n

POLL_LIMIT = 1 << 16
SLEEP = [2]
def poll_flag(a, pfx, tag, s_off, s_need, s_cache, timeout, vtmp=(250, 251), stmp=90):
    v0, v1 = vtmp
    a(f"""
    s_cmp_ge_u32 s{s_cache}, s{s_need}
    s_cbranch_scc1 {pfx}_pf_ok_{tag}
    s_mov_b32 s{stmp}, 0
    v_mov_b32 v{v1}, 0
    """)
    a.label(f"{pfx}_pf_{tag}")
    a(f"""
    buffer_load_dword v{v0}, v{v1}, s[8:11], s{s_off} offen sc1
    s_add_u32 s{stmp}, s{stmp}, 1
    s_cmp_gt_u32 s{stmp}, {POLL_LIMIT}
    s_cbranch_scc1 {timeout}
    s_waitcnt vmcnt(0)
    v_readfirstlane_b32 s{s_cache}, v{v0}
    s_cmp_ge_u32 s{s_cache}, s{s_need}
    s_cbranch_scc1 {pfx}_pf_ok_{tag}
    s_sleep {SLEEP[0]}
    s_branch {pfx}_pf_{tag}
    """)
    a.label(f"{pfx}_pf_ok_{tag}")

TRACE = [False]
TSEG = [32]
WS_TRC = WS_DBG + 0x400000
def trace(a, tag, s_slot, s_idx, vt=252):
    if not TRACE[0]: return
    lab = f"trc_{tag}"
    a(f"""
    s_cmp_eq_u32 s22, 0
    s_cbranch_scc0 {lab}
    s_waitcnt lgkmcnt(0)
    s_memrealtime s[94:95]
    s_lshl_b32 s93, s89, 9
    s_lshl_b32 s96, {s_idx}, 2
    s_add_u32 s93, s93, s96
    s_add_u32 s93, s93, {WS_TRC}
    s_waitcnt lgkmcnt(0)
    v_mov_b32 v{vt}, s94
    v_mov_b32 v{vt+1}, 0
    buffer_store_dword v{vt}, v{vt+1}, s[8:11], s93 offen
    s_memtime s[94:95]
    s_add_u32 s93, s93, 0x20000
    s_waitcnt lgkmcnt(0)
    v_mov_b32 v{vt}, s94
    buffer_store_dword v{vt}, v{vt+1}, s[8:11], s93 offen
    """)
    a.label(lab)

def trace_at(a, tag, s_seg, seg, idx, vt=252):
    if not TRACE[0]: return
    lab = f"trca_{tag}"
    a(f"s_or_b32 s88, {s_seg}, 1"); a(f"s_cmp_eq_u32 s88, {seg | 1}"); a(f"s_cbranch_scc0 {lab}")
    a(f"s_mov_b32 s88, {idx}")
    trace(a, tag + "x", "s89", "s88", vt)
    a.label(lab)
```

```python
from common import *
import r_proj, r_ln

STG = 0; OX = 32768; ROWB = OX + 8192
QB1 = 24576; KMB = 49152; OX2 = 57344
RB2 = 102400; ROWH = 0; ROWL = 1280; ROWN = 2560; STAT = 3840
KMB1 = RB2 + 4096
SQ, SK, SV, SKM, SVM = 0, 8192, 16384, 24576, 28672
PRE = 81920
NEG = "0xff7fffff"

def preload_wo_like(a, pfx, s_woff, nrows, rowbytes, kst, srd="s[12:15]"):
    a(f"""
    v_and_b32 v1, 63, v0
    v_lshrrev_b32 v2, 6, v0
    v_lshlrev_b32 v3, 4, v1
    v_mul_u32_u24 v4, 9216, v2
    v_add_u32 v4, v4, v3
    v_lshrrev_b32 v5, 4, v1                  ; g
    v_bfe_u32 v6, v1, 2, 2                   ; rho
    v_and_b32 v7, 3, v1                      ; c
    v_lshl_add_u32 v8, v5, 2, v6
    v_mul_u32_u24 v8, 1152, v8
    v_mul_u32_u24 v9, 288, v2                ; 144w*2
    v_add_u32 v8, v8, v9
    v_lshl_add_u32 v9, v7, 4, v8             ; + 8c*2      -> tiles j<8
    v_lshl_add_u32 v10, v7, 3, v8            ; + 4c*2      -> tile 8 (+256)
    v_add_u32 v9, {PRE}, v9
    v_add_u32 v10, {PRE}, v10
    v_add_u32 v11, 36864, v9
    v_add_u32 v12, 36864, v10
    s_mul_i32 s24, s22, 9216
    """)
    def dma(kap):
        b = kap % 2
        for i in range(9):
            if i % 4 == 0:
                a(f"s_add_u32 m0, s24, {PRE + b*36864 + 4096*(i//4)}")
                a(f"s_add_u32 s25, {s_woff}, {kap*32*rowbytes + 4096*(i//4)}")
            a(f"buffer_load_dwordx4 v4, {srd}, s25 offen offset:{1024*(i%4)} lds")
    dma(0)
    for kap in range(kst):
        if kap + 1 < kst:
            dma(kap + 1); a("s_waitcnt vmcnt(9)")
        else: a("s_waitcnt vmcnt(0)")
        a("s_barrier")
        b = kap % 2
        for j in range(9):
            base = (("v9", "v11") if j < 8 else ("v10", "v12"))[b]
            off = (64*(j >> 1) + 8*(j & 1)) if j < 8 else 256
            r = (j*kst + kap)*4
            a(f"ds_read_b64_tr_b16 a[{r}:{r+1}], {base} offset:{off}")
            a(f"ds_read_b64_tr_b16 a[{r+2}:{r+3}], {base} offset:{off + 16*1152}")
        a("s_waitcnt lgkmcnt(0)")
        a("s_barrier")

def reduce_rows(a, pfx, L, nparts, s_pbase, s_rowoff, extra, s_dst, dst_srd, timeout, tag, sc=" sc1"):
    nj = (nparts + 7) // 8
    a(f"""
    v_and_b32 v20, 63, v0
    v_and_b32 v21, 15, v20
    v_lshrrev_b32 v22, 4, v20                ; g_r
    v_lshrrev_b32 v23, 2, v21                ; g'
    v_and_b32 v24, 1, v21                    ; ul
    v_bfe_u32 v25, v21, 1, 1                 ; pg
    v_lshl_add_u32 v26, v23, 1, v24
    v_lshl_add_u32 v27, v22, 1, v25
    v_mul_u32_u24 v28, 36864, v27
    v_lshl_add_u32 v28, v26, 4, v28
    v_lshlrev_b32 v29, 4, v26
    v_mov_b32 v30, 0x7fff0000
    v_cmp_eq_u32 vcc, 0, v27
    v_cndmask_b32 v31, v30, v29, vcc
    v_cmp_eq_u32 vcc, 1, v27
    v_cndmask_b32 v32, v30, v29, vcc
    v_and_b32 v33, 1, v20
    v_lshlrev_b32 v33, 4, v33
    v_mov_b32 v34, 0x3f80
    v_lshlrev_b32 v33, v33, v34
    v_bfe_u32 v34, v20, 1, 2
    """)
    for r in range(4):
        a(f"v_cmp_eq_u32 vcc, {r}, v34")
        a(f"v_cndmask_b32 v{36+r}, 0, v33, vcc")
    a(f"""
    v_and_b32 v35, 7, v20
    v_lshl_add_u32 v35, v22, 4, v35
    v_lshlrev_b32 v35, 1, v35
    v_add_u32 v35, {ROWB}, v35
    """)
    for rnd in range(3):
        lab = f"{pfx}_rr{tag}_{rnd}"
        if rnd == 2:
            a("s_cmp_eq_u32 s22, 0"); a(f"s_cbranch_scc0 {lab}")
            a("s_mov_b32 s26, 8")
        else:
            a(f"s_add_u32 s26, s22, {4*rnd}")
        a("s_lshl_b32 s27, s26, 7")
        a(f"s_add_u32 s28, {s_pbase}, s27")
        a(f"s_add_u32 s28, s28, {s_rowoff}")
        n = 0
        for jj in range(nj):
            a(f"buffer_load_dwordx4 v[{40+4*jj}:{43+4*jj}], v28, s[8:11], s28 offen sc1")
            if jj + 1 < nj: a(f"s_add_u32 s28, s28, {8*36864}")
        ex = []
        for k, (srd_, so) in enumerate(extra):
            a(f"s_add_u32 s29, {so}, s27")
            a(f"buffer_load_dwordx4 v[{56+4*k}:{59+4*k}], v{31+k}, {srd_}, s29 offen sc1")
        tot = nj + len(extra)
        for q in range(tot):
            a(f"s_waitcnt vmcnt({tot-1-q})")
            r = 40 + 4*q if q < nj else 56 + 4*(q - nj)
            c = "0" if q == 0 else "v[64:67]"
            a(f"v_mfma_f32_16x16x32_bf16 v[64:67], v[{r}:{r+3}], v[36:39], {c}")
        a("v_pk_add_f32 v[64:65], v[64:65], v[66:67]")
        a("v_cvt_pk_bf16_f32 v64, v64, v65")
        a("s_lshl_b32 s27, s26, 7")
        a("v_add_u32 v65, s27, v35")
        a("ds_write_b16 v65, v64")
        a("ds_write_b16_d16_hi v65, v64 offset:16")
        a.label(lab)
    a("s_waitcnt lgkmcnt(0)")
    a("s_barrier")
    a(f"""
    v_lshlrev_b32 v40, 4, v0
    v_cmp_gt_u32 vcc, 72, v0
    s_and_saveexec_b64 s[30:31], vcc
    s_cbranch_execz {pfx}_rrs{tag}
    ds_read_b128 v[44:47], v40 offset:{ROWB}
    s_waitcnt lgkmcnt(0)
    buffer_store_dwordx4 v[44:47], v40, {dst_srd}, {s_dst} offen{sc}
    """)
    a.label(f"{pfx}_rrs{tag}")
    a("s_mov_b64 exec, s[30:31]")


def xlane_sum2(a, r1, r2, t1, t2):
    for ror in (8, 4, 2, 1):
        a(f"v_add_f32_dpp v{r1}, v{r1}, v{r1} row_ror:{ror} row_mask:0xf bank_mask:0xf")
        a(f"v_add_f32_dpp v{r2}, v{r2}, v{r2} row_ror:{ror} row_mask:0xf bank_mask:0xf")
    for sw in ("v_permlane16_swap_b32", "v_permlane32_swap_b32"):
        a(f"v_mov_b32 v{t1}, v{r1}"); a(f"v_mov_b32 v{t2}, v{r2}")
        a(f"{sw} v{r1}, v{t1}"); a(f"{sw} v{r2}, v{t2}")
        a(f"v_add_f32 v{r1}, v{r1}, v{t1}"); a(f"v_add_f32 v{r2}, v{r2}, v{t2}")

def row_stats(a, r1, r2, t1, t2, vst, off, tag):
    xlane_sum2(a, r1, r2, t1, t2)
    a(f"v_mov_b32 v{t1}, v{r1}"); a(f"v_mov_b32 v{t1+1}, v{r2}") if t2 != t1 + 1 else None
    a(f"v_mov_b32 v{t2}, v{r2}")
    a("s_mov_b64 exec, 1")
    a(f"ds_write_b64 v{vst}, v[{t1}:{t2}] offset:{off}")
    a("s_mov_b64 exec, -1")
    a("s_waitcnt lgkmcnt(0)"); a("s_barrier")
    a(f"v_mov_b32 v{t1}, {RB2}")
    a(f"ds_read_b128 v[{r1+4}:{r1+7}], v{t1} offset:{off}")
    a(f"ds_read_b128 v[{r1+8}:{r1+11}], v{t1} offset:{off+16}")
    a("s_waitcnt lgkmcnt(0)")
    a(f"v_pk_add_f32 v[{r1+4}:{r1+5}], v[{r1+4}:{r1+5}], v[{r1+6}:{r1+7}]")
    a(f"v_pk_add_f32 v[{r1+8}:{r1+9}], v[{r1+8}:{r1+9}], v[{r1+10}:{r1+11}]")
    a(f"v_pk_add_f32 v[{r1+4}:{r1+5}], v[{r1+4}:{r1+5}], v[{r1+8}:{r1+9}]")
    k = f32(0.5/576)
    a(f"v_mul_f32 v{r1}, {k}, v{r1+4}")
    a(f"v_mul_f32 v{r2}, {k}, v{r1+5}")
    a(f"v_fma_f32 v{r2}, -v{r1}, v{r1}, v{r2}")
    a(f"v_max_f32 v{r1+4}, 0, v{r2}")
    a(f"v_add_f32 v{r2}, {f32(1e-5)}, v{r1+4}")
    a(f"v_rsq_f32 v{r2}, v{r2}")

def role_attn(a, pfx, s_h, s_par, nseg=64, step=NGRP, dbg=False, pre_wait=None):
    TO = f"{pfx}_timeout"
    a("v_lshrrev_b32 v2, 6, v0"); a("s_nop 0"); a("v_readfirstlane_b32 s22, v2")
    a(f"s_mul_i32 s40, {s_h}, 147456")
    preload_wo_like(a, pfx, "s40", 128, 1152, 4)
    a("s_barrier")
    a("s_mov_b32 s12, s36"); a("s_and_b32 s13, s37, 0xffff")
    a(f"s_lshl_b32 s23, {s_h}, 8")
    wq = lambda i: ('a', 144 + 4*i) if i < 28 else ('v', 216 + 4*(i - 28))
    r_proj.preload_w128(a, 8192, "s23", dest=wq)
    a("s_barrier")
    L = Cnt(a, "lgkmcnt", 15)
    XQ = 65536
    SEL = 200; vPL, vXL, vRW, vST, vFO, vFR = 204, 205, 206, 207, 208, 209
    a(f"""
    v_and_b32 v1, 63, v0
    v_lshrrev_b32 v2, 6, v0
    v_lshlrev_b32 v3, 4, v1                  ; lane*16
    v_lshl_add_u32 v4, v2, 11, v3            ; w*2048 + lane*16
    v_lshlrev_b32 v5, 4, v0                  ; tid*16
    v_and_b32 v6, 15, v1                     ; n
    v_lshrrev_b32 v7, 4, v1                  ; g
    v_mul_u32_u24 v8, 1152, v6
    v_mul_u32_u24 v9, 288, v2
    v_add_u32 v8, v8, v9
    v_lshl_add_u32 v9, v7, 3, v8
    v_add_u32 v9, 256, v9
    v_lshl_add_u32 v8, v7, 4, v8
    v_lshlrev_b32 v10, 2, v7                 ; 4g
    s_and_b32 s41, s22, 1                    ; qt
    s_lshr_b32 s42, s22, 1                   ; eh
    s_mov_b32 s43, {s_par}                   ; segment
    s_mov_b32 s44, 0                         ; iteration
    s_mov_b32 s45, 0
    s_mov_b32 s46, 0
    s_mov_b32 s47, 0
    s_mov_b32 s48, 0
    s_mov_b32 s68, 0
    s_lshl_b32 s49, {s_h}, 7
    s_add_u32 s49, s49, {WS_FLG}
    v_lshrrev_b32 v11, 2, v6                 ; g'
    v_and_b32 v12, 1, v6                     ; ul
    v_bfe_u32 v13, v6, 1, 1                  ; pg
    v_lshl_add_u32 v14, v11, 1, v12
    v_lshl_add_u32 v15, v7, 1, v13
    v_mul_u32_u24 v16, 36864, v15
    v_lshl_add_u32 v{vPL}, v14, 4, v16
    v_lshlrev_b32 v16, 4, v14
    v_mov_b32 v17, 0x7fff0000
    v_cmp_eq_u32 vcc, 0, v15
    v_cndmask_b32 v{vXL}, v17, v16, vcc
    v_and_b32 v16, 1, v1
    v_lshlrev_b32 v16, 4, v16
    v_mov_b32 v17, 0x3f80
    v_lshlrev_b32 v16, v16, v17
    v_bfe_u32 v17, v1, 1, 2
    """)
    for r in range(4):
        a(f"v_cmp_eq_u32 vcc, {r}, v17")
        a(f"v_cndmask_b32 v{SEL+r}, 0, v16, vcc")
    a(f"""
    v_and_b32 v16, 7, v1
    v_lshl_add_u32 v16, v7, 4, v16
    v_lshlrev_b32 v16, 1, v16
    v_add_u32 v16, {RB2}, v16
    v_lshl_add_u32 v{vRW}, v2, 7, v16
    v_lshlrev_b32 v{vST}, 3, v2              ; wave*8
    v_add_u32 v{vST}, {RB2}, v{vST}
    ; final stores: thread t < 216: array a = t/72, unit u = t%72
    v_mul_u32_u24 v16, 911, v0
    v_lshrrev_b32 v16, 16, v16               ; t/72
    v_mul_u32_u24 v17, 72, v16
    v_sub_u32 v17, v0, v17                   ; u
    v_mul_u32_u24 v18, 1280, v16
    v_lshl_add_u32 v{vFR}, v17, 4, v18
    v_add_u32 v{vFR}, {RB2}, v{vFR}
    v_lshlrev_b32 v18, 4, v17
    v_lshrrev_b32 v19, 1, v17
    v_lshlrev_b32 v19, 10, v19
    v_and_b32 v20, 1, v17
    v_lshl_add_u32 v19, v20, 9, v19          ; fragment: (u>>1)*1024 + (u&1)*512
    s_lshl_b32 s50, {s_h}, 4
    v_add_u32 v19, s50, v19                  ;   + token*16
    v_add_u32 v19, {WS_XN2F}, v19
    s_mul_i32 s50, {s_h}, 1152
    v_add_u32 v18, s50, v18                  ;   + token*1152
    v_add_u32 v20, {WS_HROW}, v18
    v_add_u32 v21, {WS_LNH}, v18
    v_cmp_eq_u32 vcc, 0, v16
    v_cndmask_b32 v{vFO}, v21, v20, vcc
    v_cmp_eq_u32 vcc, 2, v16
    v_cndmask_b32 v{vFO}, v{vFO}, v19, vcc
    v_mov_b32 v17, 0x7fff0000
    v_cmp_lt_u32 vcc, 215, v0
    v_cndmask_b32 v{vFO}, v{vFO}, v17, vcc
    """)
    for r in range(4):
        a(f"v_add_u32 v11, {r}, v10")
        a(f"v_cmp_gt_u32 s[{60+2*r}:{61+2*r}], v11, v6")
    vXD, vXR, vQW, vKG = 210, 211, 212, 213
    a(f"""
    v_lshrrev_b32 v11, 2, v6
    v_and_b32 v12, 1, v6
    v_lshl_add_u32 v11, v11, 1, v12          ; key = 2*(n>>2) + (n&1)
    v_lshl_add_u32 v11, v7, 3, v11           ; 8g + key
    v_lshlrev_b32 v11, 4, v11
    v_lshl_add_u32 v{vKG}, v2, 9, v11        ; + w*512
    """)
    a(f"""
    v_mul_u32_u24 v11, 9216, v2
    v_add_u32 v{vXD}, v11, v3
    v_add_u32 v{vXR}, {XQ}, v3
    v_and_b32 v11, 31, v1
    v_lshrrev_b32 v11, 4, v11
    v_lshlrev_b32 v11, 10, v11
    v_lshrrev_b32 v12, 5, v1
    v_lshl_add_u32 v12, v12, 4, v6
    v_lshl_add_u32 v11, v12, 4, v11
    v_lshl_add_u32 v{vQW}, v2, 11, v11
    s_mov_b32 s38, {f32(QSCALE)}
    s_mov_b32 s39, {f32(QSCALE)}
    """)
    def wait_qkv(tag, s_seg):
        a(f"s_add_u32 s50, {s_seg}, 1")
        for k, (fl, c) in enumerate(((FL_K, 46), (FL_V, 47))):
            a(f"s_add_u32 s51, s49, {128*fl}")
            poll_flag(a, pfx, f"{tag}{k}", 51, 50, c, TO)
    def dma_qkv(s_seg, s_buf):
        a(f"s_lshl_b32 s52, {s_seg}, 5"); a(f"s_add_u32 s52, s52, {s_h}")
        a("s_lshl_b32 s53, s52, 13")
        a("s_lshl_b32 s55, s22, 11"); a(f"s_add_u32 s55, s55, {s_buf}")
        for (ws, reg) in ((WS_KB, SK), (WS_VB, SV)):
            a(f"s_add_u32 m0, s55, {reg}")
            a(f"s_add_u32 s56, s53, {ws}")
            a("buffer_load_dwordx4 v4, s[8:11], s56 offen sc1 lds")
            a("buffer_load_dwordx4 v4, s[8:11], s56 offen offset:1024 sc1 lds")
        a(f"s_mul_i32 s53, {s_seg}, 36864"); a(f"s_add_u32 s53, s53, {WS_XNF}")
        a("s_mul_i32 s55, s22, 9216")
        for j in range(3):
            a(f"s_add_u32 m0, s55, {XQ + 4096*j}")
            a(f"s_add_u32 s56, s53, {4096*j}")
            for i in range(4 if j < 2 else 1):
                a(f"buffer_load_dwordx4 v{vXD}, s[8:11], s56 offen offset:{1024*i} sc1 lds")
    if pre_wait: pre_wait()
    a(f"s_mov_b32 s51, {FLG(FL_LN1)}"); a("s_mov_b32 s50, 1")
    r_ln.poll_line(a, pfx, "ln1", "s51", 64, 128, "s50", TO)
    def dma_km(s_seg, s_img):
        a(f"s_lshl_b32 s52, {s_seg}, 5"); a(f"s_add_u32 s52, s52, {s_h}"); a("s_lshl_b32 s54, s52, 12")
        a("s_lshl_b32 s55, s22, 10"); a(f"s_add_u32 s55, s55, {s_img}")
        a("s_mov_b32 m0, s55")
        a(f"s_add_u32 s56, s54, {WS_KM}")
        a(f"buffer_load_dwordx4 v{vKG}, s[8:11], s56 offen sc1 lds")
        a("s_add_u32 m0, s55, 4096")
        a(f"s_add_u32 s56, s54, {WS_VM}")
        a(f"buffer_load_dwordx4 v5, s[8:11], s56 offen sc1 lds")
    def pub_h(s_val, tag):
        a(f"""
        s_cmp_eq_u32 s22, 0
        s_cbranch_scc0 {pfx}_nph_{tag}
        s_lshl_b32 s73, {s_par}, 5
        s_add_u32 s73, s73, {s_h}
        s_lshl_b32 s73, s73, 7
        s_add_u32 s73, s73, {FLG(FL_H)}
        v_mov_b32 v214, {s_val}
        v_mov_b32 v215, 0
        s_mov_b64 exec, 1
        buffer_store_dword v214, v215, s[8:11], s73 offen sc1
        s_mov_b64 exec, -1
        """)
        a.label(f"{pfx}_nph_{tag}")
    def qproj(s_buf):
        L.reset()
        qt_ = {}
        def qrd(k): qt_[k] = L.issue(f"ds_read_b128 v[{16+4*(k%4)}:{19+4*(k%4)}], v{vXR} offset:{k*1024}")
        for k in range(3): qrd(k)
        for k in range(36):
            if k + 3 < 36: qrd(k + 3)
            L.wait(qt_[k])
            kind, r = wq(k)
            c = "0" if k == 0 else "v[32:47]"
            a(f"v_mfma_f32_32x32x16_bf16 v[32:47], {kind}[{r}:{r+3}], v[{16+4*(k%4)}:{19+4*(k%4)}], {c}")
        for k in range(0, 16, 2): a(f"v_pk_mul_f32 v[{32+k}:{33+k}], v[{32+k}:{33+k}], s[38:39]")
        r_proj.pack_swap(a)
        a(f"v_add_u32 v11, {s_buf}, v{vQW}")
        L.issue(f"ds_write_b128 v11, v[48:51] offset:{SQ}")
        L.issue(f"ds_write_b128 v11, v[52:55] offset:{SQ + 512}")
        L.drain()
    a("s_mov_b32 s37, 0")
    a("s_mov_b32 s35, 0")
    a("s_mov_b32 s33, 0")
    LOOP = f"{pfx}_loop"
    a.label(LOOP)
    trace_at(a, f"{pfx}_top", "s43", TSEG[0], 103)
    a(f"s_and_b32 s57, s44, 1"); a(f"s_mul_i32 s57, s57, {QB1}")
    a(f"s_cmp_eq_u32 s68, 1"); a(f"s_cbranch_scc1 {pfx}_haveq")
    wait_qkv("a", "s43")
    dma_qkv("s43", "s57")
    a("s_waitcnt vmcnt(0)")
    a("s_barrier")
    qproj("s57")
    a.label(f"{pfx}_haveq")
    a("s_cmp_eq_u32 s37, 0"); a(f"s_cbranch_scc1 {pfx}_notop")
    a("s_cmp_gt_u32 s35, s43"); a(f"s_cbranch_scc1 {pfx}_notop")
    a("s_waitcnt vmcnt(0)"); a("s_barrier")
    pub_h("s37", "top")
    a("s_mov_b32 s37, 0")
    a.label(f"{pfx}_notop")
    a("s_max_u32 s48, s48, s35") if False else None
    a(f"s_and_b32 s34, s44, 1"); a(f"s_mul_i32 s34, s34, {KMB1 - KMB}"); a(f"s_add_u32 s34, s34, {KMB}")
    a("s_cmp_eq_u32 s33, 1"); a(f"s_cbranch_scc1 {pfx}_havekm")
    a("s_add_u32 s50, s43, 1"); a(f"s_add_u32 s51, s49, {128*FL_KM}")
    poll_flag(a, pfx, "km", 51, 50, 48, TO)
    dma_km("s43", "s34")
    a.label(f"{pfx}_havekm")
    a("s_mov_b32 s33, 0")
    trace_at(a, f"{pfx}_a0", "s43", TSEG[0], 102)
    a("v_add_u32 v11, s57, v3")
    L.drain()
    a("s_barrier")
    L.reset()
    QF = 16; KF = 32; SD, SMm, SF = 48, 52, 56
    for qt in range(2):
        if qt == 0:
            a("s_cmp_eq_u32 s41, 0"); a(f"s_cbranch_scc0 {pfx}_qt1")
        else:
            a.label(f"{pfx}_qt1"); L.reset()
        tq = [L.issue(f"ds_read_b128 v[{QF+4*k}:{QF+4*k+3}], v11 offset:{SQ + k*2048 + qt*1024}") for k in range(4)]
        def tile(acc, base, off_of_k, kf):
            t = [L.issue(f"ds_read_b128 v[{kf+4*k}:{kf+4*k+3}], {base} offset:{off_of_k(k)}") for k in range(4)]
            return t
        def tmm(acc, t, kf):
            for k in range(4):
                L.wait(t[k])
                c = "0" if k == 0 else f"v[{acc}:{acc+3}]"
                a(f"v_mfma_f32_16x16x32_bf16 v[{acc}:{acc+3}], v[{kf+4*k}:{kf+4*k+3}], v[{QF+4*k}:{QF+4*k+3}], {c}")
        tD = tile(SD, "v11", lambda k: SK + k*2048 + qt*1024, KF)
        if qt == 1: tF = tile(SF, "v11", lambda k: SK + k*2048, 128)
        a("s_lshl_b32 s58, s42, 12"); a("v_add_u32 v12, s58, v11")
        tv = [L.issue(f"ds_read_b128 v[{64+4*i}:{67+4*i}], v12 offset:{SV + i*1024}") for i in range(4)]
        tmm(SD, tD, KF)
        if qt == 1: tmm(SF, tF, 128)
        L.drain()
        a("s_waitcnt vmcnt(0)")
        a("s_barrier")
        a("s_cmp_eq_u32 s37, 0"); a(f"s_cbranch_scc1 {pfx}_nopend{qt}")
        pub_h("s37", f"d{qt}")
        a("s_mov_b32 s37, 0")
        a.label(f"{pfx}_nopend{qt}")
        a("s_mov_b32 s68, 0")
        a(f"s_add_u32 s69, s43, {step}"); a(f"s_cmp_ge_u32 s69, {nseg}"); a(f"s_cbranch_scc1 {pfx}_nopf{qt}")
        a("s_min_u32 s50, s46, s47"); a("s_cmp_gt_u32 s50, s69"); a(f"s_cbranch_scc0 {pfx}_nopf{qt}")
        a(f"s_sub_u32 s70, {QB1}, s57")
        dma_qkv("s69", "s70")
        a("s_mov_b32 s68, 1")
        a.label(f"{pfx}_nopf{qt}")
        a("v_add_u32 v15, s34, v3")
        tM = tile(SMm, "v15", lambda k: k*1024, KF)
        a("s_lshl_b32 s58, s42, 10"); a("s_add_u32 s58, s58, s34"); a("v_lshrrev_b32 v13, 1, v3"); a("v_add_u32 v13, s58, v13")
        tm = [L.issue(f"ds_read_b32 v{80+2*i}, v13 offset:{4096 + (i >> 1)*512 + (i & 1)*4}") for i in range(4)]
        for i in range(4): a(f"v_mov_b32 v{81+2*i}, 0")
        a(f"v_mov_b32 v14, {NEG}")
        for r in range(4): a(f"v_cndmask_b32 v{SD+r}, v{SD+r}, v14, s[{60+2*r}:{61+2*r}]")
        a(f"v_max3_f32 v14, v{SD}, v{SD+1}, v{SD+2}")
        a(f"v_max_f32 v14, v14, v{SD+3}")
        if qt == 1:
            a(f"v_max3_f32 v14, v14, v{SF}, v{SF+1}")
            a(f"v_max3_f32 v14, v14, v{SF+2}, v{SF+3}")
        tmm(SMm, tM, KF)
        a(f"v_max3_f32 v14, v14, v{SMm}, v{SMm+1}")
        a("""
        v_mov_b32 v15, v14
        v_permlane32_swap_b32 v14, v15
        v_max_f32 v14, v14, v15
        v_mov_b32 v15, v14
        v_permlane16_swap_b32 v14, v15
        v_max_f32 v14, v14, v15
        """)
        regs = [SD+r for r in range(4)] + [SMm, SMm+1] + ([SF+r for r in range(4)] if qt == 1 else [])
        for r in regs: a(f"v_sub_f32 v{r}, v{r}, v14")
        for r in regs: a(f"v_exp_f32 v{r}, v{r}")
        PT = 60; PM = 88
        if qt == 0:
            a(f"v_cvt_pk_bf16_f32 v{PT}, v{SD}, v{SD+1}"); a(f"v_cvt_pk_bf16_f32 v{PT+1}, v{SD+2}, v{SD+3}")
            a(f"v_mov_b64 v[{PT+2}:{PT+3}], 0")
        else:
            a(f"v_cvt_pk_bf16_f32 v{PT}, v{SF}, v{SF+1}"); a(f"v_cvt_pk_bf16_f32 v{PT+1}, v{SF+2}, v{SF+3}")
            a(f"v_cvt_pk_bf16_f32 v{PT+2}, v{SD}, v{SD+1}"); a(f"v_cvt_pk_bf16_f32 v{PT+3}, v{SD+2}, v{SD+3}")
        a(f"v_cvt_pk_bf16_f32 v{PM}, v{SMm}, v{SMm+1}"); a(f"v_cvt_pk_bf16_f32 v{PM+1}, v{SMm}, v{SMm+1}")
        for r in range(4): a(f"v_mov_b32 v{92+r}, 0x3f803f80")
        for r in range(2): a(f"v_mov_b32 v{96+r}, 0x3f003f00")
        a(f"v_mfma_f32_16x16x32_bf16 v[100:103], v[92:95], v[{PT}:{PT+3}], 0")
        L.wait(tm[3])
        for i in range(4):
            o = 104 + 4*i
            a(f"v_mfma_f32_16x16x32_bf16 v[{o}:{o+3}], v[{64+4*i}:{67+4*i}], v[{PT}:{PT+3}], 0")
        a(f"v_mfma_f32_16x16x16_bf16 v[100:103], v[96:97], v[{PM}:{PM+1}], v[100:103]")
        for i in range(4):
            o = 104 + 4*i
            a(f"v_mfma_f32_16x16x16_bf16 v[{o}:{o+3}], v[{80+2*i}:{81+2*i}], v[{PM}:{PM+1}], v[{o}:{o+3}]")
        a("v_rcp_f32 v100, v100")
        for i in range(4):
            o = 104 + 4*i
            for r in range(0, 4, 2): a(f"v_pk_mul_f32 v[{o+r}:{o+r+1}], v[{o+r}:{o+r+1}], v[100:101] op_sel_hi:[1,0]")
        for m in range(2):
            for t in range(2):
                o = 104 + 4*(2*m + t)
                a(f"v_cvt_pk_bf16_f32 v{120+4*m+2*t}, v{o}, v{o+1}")
                a(f"v_cvt_pk_bf16_f32 v{121+4*m+2*t}, v{o+2}, v{o+3}")
        a("s_lshl_b32 s58, s42, 11"); a("v_add_u32 v12, s58, v3")
        L.issue(f"ds_write_b128 v12, v[120:123] offset:{OX2 + qt*4096}")
        L.issue(f"ds_write_b128 v12, v[124:127] offset:{OX2 + qt*4096 + 1024}")
        L.drain()
        if qt == 0: a(f"s_branch {pfx}_att_done")
    a.label(f"{pfx}_att_done")
    a("s_barrier")
    trace_at(a, f"{pfx}_a2", "s43", TSEG[0], 104)
    L.reset()
    OF = 16
    tok = [L.issue(f"ds_read_b128 v[{OF+4*k}:{OF+4*k+3}], v3 offset:{OX2 + k*1024}") for k in range(8)]
    a(f"s_and_b32 s58, s44, 1"); a(f"s_mul_i32 s58, s58, {P3_SLOT}")
    a(f"s_mul_i32 s59, {s_par}, {2*P3_SLOT}")
    a("s_add_u32 s58, s58, s59"); a(f"s_add_u32 s58, s58, {WS_P3}")
    a(f"s_mul_i32 s59, {s_h}, 36864"); a("s_add_u32 s59, s59, s58")
    a("s_add_u32 s70, s59, %d" % (16*1152))
    def mm(j, accs):
        for kap in range(4):
            for qt in range(2):
                L.wait(tok[qt*4 + kap])
                c = "0" if kap == 0 else f"v[{accs[qt]}:{accs[qt]+3}]"
                r = (j*4 + kap)*4
                a(f"v_mfma_f32_16x16x32_bf16 v[{accs[qt]}:{accs[qt]+3}], a[{r}:{r+3}], v[{OF+16*qt+4*kap}:{OF+16*qt+4*kap+3}], {c}")
    def epi_pair(jp, A, B, base):
        for qt in range(2):
            d = base + 4*qt
            a(f"v_cvt_pk_bf16_f32 v{d}, v{A[qt]}, v{A[qt]+1}"); a(f"v_cvt_pk_bf16_f32 v{d+1}, v{A[qt]+2}, v{A[qt]+3}")
            a(f"v_cvt_pk_bf16_f32 v{d+2}, v{B[qt]}, v{B[qt]+1}"); a(f"v_cvt_pk_bf16_f32 v{d+3}, v{B[qt]+2}, v{B[qt]+3}")
            a(f"buffer_store_dwordx4 v[{d}:{d+3}], v8, s[8:11], s{59 if qt == 0 else 70} offen offset:{64*jp}")
    sets = [([64, 68], [72, 76], 96), ([80, 84], [88, 92], 104)]
    for jp in range(4):
        A, B, base = sets[jp % 2]
        mm(2*jp, A); mm(2*jp + 1, B)
        if jp > 0:
            A2, B2, b2 = sets[(jp - 1) % 2]; epi_pair(jp - 1, A2, B2, b2)
    mm(8, [112, 116])
    A2, B2, b2 = sets[1]; epi_pair(3, A2, B2, b2)
    for qt in range(2):
        s = [112, 116][qt]; d = 120 + 2*qt
        a(f"v_cvt_pk_bf16_f32 v{d}, v{s}, v{s+1}"); a(f"v_cvt_pk_bf16_f32 v{d+1}, v{s+2}, v{s+3}")
        a(f"buffer_store_dwordx2 v[{d}:{d+1}], v9, s[8:11], s{59 if qt == 0 else 70} offen")
    a("s_waitcnt vmcnt(0)")
    a("s_barrier")
    trace_at(a, f"{pfx}_a3", "s43", TSEG[0], 105)
    a(f"s_and_b32 s71, s44, 1"); a(f"s_lshl_b32 s72, {s_par}, 1"); a("s_add_u32 s71, s71, s72")
    a("s_lshl_b32 s71, s71, 7"); a(f"s_add_u32 s71, s71, {FLG(FL_P3)}")
    a("s_add_u32 s72, s43, 1")
    a(f"""
    s_cmp_eq_u32 s22, 0
    s_cbranch_scc0 {pfx}_nopub
    v_mov_b32 v16, s72
    s_lshl_b32 s73, {s_h}, 2
    v_mov_b32 v17, s73
    s_mov_b64 exec, 1
    buffer_store_dword v16, v17, s[8:11], s71 offen
    s_mov_b64 exec, -1
    """)
    a.label(f"{pfx}_nopub")
    a("s_cmp_eq_u32 s68, 1"); a(f"s_cbranch_scc0 {pfx}_noq2")
    a(f"s_sub_u32 s76, {QB1}, s57")
    qproj("s76")
    a.label(f"{pfx}_noq2")
    a(f"s_mul_i32 s74, {s_h}, 1152"); a("s_add_u32 s74, s74, s58")
    a(f"s_lshl_b32 s75, s43, 5"); a(f"s_add_u32 s75, s75, {s_h}"); a("s_mul_i32 s75, s75, 1152")
    a("s_lshl_b32 s76, s22, 7"); a("s_add_u32 s74, s74, s76"); a("s_add_u32 s75, s75, s76")
    a(f"""
    v_and_b32 v17, 31, v0
    v_lshlrev_b32 v17, 2, v17
    s_mov_b32 s73, 0
    v_mov_b32 v19, 0
    s_add_u32 s51, s49, {128*FL_KM}
    buffer_load_dword v18, v19, s[8:11], s51 offen sc1
    """)
    a.label(f"{pfx}_p3poll")
    a(f"""
    buffer_load_dword v16, v17, s[8:11], s71 offen sc1
    s_add_u32 s73, s73, 1
    s_cmp_gt_u32 s73, {POLL_LIMIT}
    s_cbranch_scc1 {TO}
    s_waitcnt vmcnt(0)
    v_cmp_ne_u32 vcc, s72, v16
    s_cbranch_vccnz {pfx}_p3poll
    """)
    a("v_readfirstlane_b32 s50, v18"); a("s_max_u32 s48, s48, s50")
    trace_at(a, f"{pfx}_a4", "s43", TSEG[0], 106)
    def tile_loads(q, toff):
        for jj in range(4):
            a(f"s_add_u32 s76, s74, {toff + jj*8*36864}")
            a(f"buffer_load_dwordx4 v[{16+20*q+4*jj}:{19+20*q+4*jj}], v{vPL}, s[8:11], s76 offen sc1")
        a(f"s_add_u32 s76, s75, {toff}")
        a(f"buffer_load_dwordx4 v[{32+20*q}:{35+20*q}], v{vXL}, s[4:7], s76 offen")
    def tile_mm(q, nafter):
        for k in range(5):
            a(f"s_waitcnt vmcnt({nafter + 4 - k})")
            c = "0" if k == 0 else f"v[{80+4*q}:{83+4*q}]"
            a(f"v_mfma_f32_16x16x32_bf16 v[{80+4*q}:{83+4*q}], v[{16+20*q+4*k}:{19+20*q+4*k}], v[{SEL}:{SEL+3}], {c}")
    tile_loads(0, 0); tile_loads(1, 512)
    a("v_mov_b64 v[88:89], 0"); a("v_mov_b64 v[90:91], 0")
    a("s_cmp_eq_u32 s22, 0"); a(f"s_cbranch_scc0 {pfx}_two")
    tile_loads(2, 1024)
    tile_mm(0, 10); tile_mm(1, 5); tile_mm(2, 0)
    a(f"s_branch {pfx}_red")
    a.label(f"{pfx}_two")
    tile_mm(0, 5); tile_mm(1, 0)
    a.label(f"{pfx}_red")
    a(f"s_add_u32 s69, s43, {step}"); a(f"s_cmp_ge_u32 s69, {nseg}"); a(f"s_cbranch_scc1 {pfx}_nokpf")
    a("s_cmp_gt_u32 s48, s69"); a(f"s_cbranch_scc0 {pfx}_nokpf")
    a(f"s_sub_u32 s70, {KMB + KMB1}, s34")
    dma_km("s69", "s70")
    a("s_mov_b32 s33, 1")
    a.label(f"{pfx}_nokpf")
    a("s_nop 7")
    trace_at(a, f"{pfx}_a5", "s43", TSEG[0], 107)
    H = [92, 94, 96]
    R1, R2, T1, T2 = 100, 101, 112, 113
    def rnd(src_lo, src_hi, dstpair, pk):
        a(f"v_cvt_pk_bf16_f32 v{pk}, v{src_lo}, v{src_hi}")
        a(f"v_lshlrev_b32 v{dstpair}, 16, v{pk}")
        a(f"v_and_b32 v{dstpair+1}, 0xffff0000, v{pk}")
    def wr(pk, q, row):
        a(f"ds_write_b16 v{vRW}, v{pk} offset:{row + 512*q}")
        a(f"ds_write_b16_d16_hi v{vRW}, v{pk} offset:{row + 512*q + 16}")
    def third(body, tag):
        a("s_cmp_eq_u32 s22, 0"); a(f"s_cbranch_scc0 {pfx}_t3{tag}")
        body(); a.label(f"{pfx}_t3{tag}")
    def stats():
        a(f"v_add_f32 v{R1}, v{H[0]}, v{H[0]+1}"); a(f"v_mul_f32 v{R2}, v{H[0]}, v{H[0]}")
        a(f"v_fmac_f32 v{R2}, v{H[0]+1}, v{H[0]+1}")
        for q in (1, 2):
            a(f"v_add_f32 v{R1}, v{R1}, v{H[q]}"); a(f"v_fmac_f32 v{R2}, v{H[q]}, v{H[q]}")
            a(f"v_add_f32 v{R1}, v{R1}, v{H[q]+1}"); a(f"v_fmac_f32 v{R2}, v{H[q]+1}, v{H[q]+1}")
    for q in range(3):
        a(f"v_pk_add_f32 v[{80+4*q}:{81+4*q}], v[{80+4*q}:{81+4*q}], v[{82+4*q}:{83+4*q}]")
        rnd(80+4*q, 81+4*q, H[q], 116+q)
    wr(116, 0, ROWH); wr(117, 1, ROWH); third(lambda: wr(118, 2, ROWH), "a")
    stats(); row_stats(a, R1, R2, T1, T2, vST, STAT, "1")
    def norm():
        for q in range(3):
            for e in range(2):
                a(f"v_sub_f32 v{H[q]+e}, v{H[q]+e}, v{R1}"); a(f"v_mul_f32 v{H[q]+e}, v{H[q]+e}, v{R2}")
    norm()
    for q in range(3): rnd(H[q], H[q]+1, H[q], 116+q)
    wr(116, 0, ROWL); wr(117, 1, ROWL); third(lambda: wr(118, 2, ROWL), "b")
    a(f"v_mul_f32 v{R1+4}, v{R1+4}, v{R2}"); a(f"v_mov_b32 v{R1+5}, {f32(1e-5)}"); a(f"v_fmac_f32 v{R1+5}, v{R1+4}, v{R2}")
    a(f"v_rsq_f32 v{R1+5}, v{R1+5}")
    for q in range(3):
        a(f"v_mul_f32 v{H[q]}, v{H[q]}, v{R1+5}"); a(f"v_mul_f32 v{H[q]+1}, v{H[q]+1}, v{R1+5}")
    for q in range(3): a(f"v_cvt_pk_bf16_f32 v{116+q}, v{H[q]}, v{H[q]+1}")
    wr(116, 0, ROWN); wr(117, 1, ROWN); third(lambda: wr(118, 2, ROWN), "c")
    a("s_cmp_eq_u32 s22, 0"); a(f"s_cbranch_scc0 {pfx}_nobc")
    a(f"v_mov_b32 v20, s48"); a(f"v_mov_b32 v21, {RB2}"); a(f"ds_write_b32 v21, v20 offset:{STAT + 128}")
    a.label(f"{pfx}_nobc")
    a("s_waitcnt lgkmcnt(0)"); a("s_barrier")
    trace_at(a, f"{pfx}_a6", "s43", TSEG[0], 108)
    a(f"ds_read_b128 v[16:19], v{vFR} offset:{ROWH}")
    a("s_mul_i32 s76, s43, 36864")
    a(f"v_mov_b32 v21, {RB2}"); a(f"ds_read_b32 v20, v21 offset:{STAT + 128}")
    a("s_waitcnt lgkmcnt(0)")
    a("v_readfirstlane_b32 s35, v20")
    a(f"buffer_store_dwordx4 v[16:19], v{vFO}, s[8:11], s76 offen sc1")
    a("s_mov_b32 s37, s72")
    a(f"s_add_u32 s73, s43, {step}"); a(f"s_cmp_lt_u32 s73, {nseg}"); a(f"s_cbranch_scc1 {pfx}_defer")
    a("s_waitcnt vmcnt(0)")
    a("s_barrier")
    pub_h("s72", "now")
    a.label(f"{pfx}_defer")
    trace(a, f"{pfx}_seg", "s89", "s43")
    a(f"s_add_u32 s43, s43, {step}"); a("s_add_u32 s44, s44, 1")
    a(f"s_cmp_lt_u32 s43, {nseg}"); a(f"s_cbranch_scc1 {LOOP}")
    a.label(TO)
```

```python
from common import *

def ln_setup(a):
    a(f"""
    v_and_b32 v1, 63, v0            ; lane
    v_lshrrev_b32 v2, 6, v0         ; wave
    v_and_b32 v3, 31, v1            ; token
    v_lshrrev_b32 v4, 5, v1         ; hi
    v_mul_u32_u24 v5, 1152, v3
    v_lshlrev_b32 v6, 4, v4
    v_add_u32 v5, v5, v6
    v_mul_u32_u24 v6, {9*32}, v2
    v_add_u32 v5, v5, v6            ; v5 = row-major offset: token*1152 + hi*16 + wave*288
    v_lshlrev_b32 v9, 4, v1
    v_mul_u32_u24 v10, 9216, v2
    v_add_u32 v9, v9, v10
    v_lshrrev_b32 v6, 4, v3
    v_lshlrev_b32 v6, 10, v6
    v_lshl_add_u32 v6, v4, 8, v6
    v_and_b32 v7, 15, v3
    v_lshl_add_u32 v6, v7, 4, v6
    s_nop 0
    v_readfirstlane_b32 s22, v2
    """)

def xreduce(a, reg, ldsoff):
    a(f"""
    v_mov_b32 v8, v{reg}
    v_permlane32_swap_b32 v{reg}, v8
    v_add_f32 v{reg}, v{reg}, v8
    v_lshlrev_b32 v11, 2, v3
    v_lshl_add_u32 v12, v2, 7, v11
    ds_write_b32 v12, v{reg} offset:{ldsoff}
    s_waitcnt lgkmcnt(0)
    s_barrier
    ds_read_b32 v12, v11 offset:{ldsoff}
    ds_read_b32 v13, v11 offset:{ldsoff+128}
    ds_read_b32 v14, v11 offset:{ldsoff+256}
    ds_read_b32 v15, v11 offset:{ldsoff+384}
    s_waitcnt lgkmcnt(0)
    v_add_f32 v12, v12, v13
    v_add_f32 v14, v14, v15
    v_add_f32 v{reg}, v12, v14
    """)

def unpack(a):
    for i in range(9):
        for j in range(4):
            r = 16+4*i+j
            a(f"v_lshlrev_b32 v{64+8*i+2*j}, 16, v{r}")
            a(f"v_and_b32 v{65+8*i+2*j}, 0xffff0000, v{r}")

def normalize(a, lds):
    a("v_add_f32 v7, v64, v65")
    for k in range(66, 136): a(f"v_add_f32 v7, v7, v{k}")
    xreduce(a, 7, lds)
    a(f"v_mul_f32 v7, {f32(1.0/576)}, v7")
    for k in range(64, 136): a(f"v_sub_f32 v{k}, v{k}, v7")
    a("v_mul_f32 v52, v64, v64")
    for k in range(65, 136): a(f"v_fmac_f32 v52, v{k}, v{k}")
    xreduce(a, 52, lds + 512)
    a(f"""
    v_mov_b32 v8, {f32(1e-5)}
    v_fmac_f32 v8, {f32(1.0/576)}, v52
    v_rsq_f32 v8, v8
    """)
    for k in range(64, 136, 2): a(f"v_pk_mul_f32 v[{k}:{k+1}], v[{k}:{k+1}], v[8:9] op_sel_hi:[1,0]")

def pack(a):
    for i in range(9):
        for j in range(4):
            a(f"v_cvt_pk_bf16_f32 v{16+4*i+j}, v{64+8*i+2*j}, v{65+8*i+2*j}")

def ln_segment(a, src_srd, s_src, outs, double=False, sc=" sc1"):
    for i in range(9):
        a(f"buffer_load_dwordx4 v[{16+4*i}:{19+4*i}], v5, {src_srd}, {s_src} offen offset:{32*i}{sc}")
    a("s_waitcnt vmcnt(0)")
    unpack(a); normalize(a, 0); pack(a)
    def store(kind, s_base):
        if kind == 'row':
            for i in range(9): a(f"buffer_store_dwordx4 v[{16+4*i}:{19+4*i}], v5, s[8:11], {s_base} offen offset:{32*i} sc1")
        elif kind == 'f32':
            a(f"s_mov_b32 s21, {s_base}")
            for i in range(9):
                if i in (4, 8): a("s_add_u32 s21, s21, 4096")
                a(f"buffer_store_dwordx4 v[{16+4*i}:{19+4*i}], v9, s[8:11], s21 offen offset:{1024*(i%4)} sc1")
        else:
            for i in range(9):
                a(f"s_mul_i32 s20, s22, 18"); a(f"s_add_u32 s20, s20, {2*i}")
                a("s_lshr_b32 s21, s20, 2"); a("s_lshl_b32 s21, s21, 11")
                a("s_and_b32 s20, s20, 3"); a("s_lshl_b32 s20, s20, 8")
                a("s_add_u32 s21, s21, s20"); a(f"s_add_u32 s21, s21, {s_base}")
                a(f"buffer_store_dwordx4 v[{16+4*i}:{19+4*i}], v6, s[8:11], s21 offen sc1")
    for (k, st, sb) in outs:
        if st == 1: store(k, sb)
    if double:
        unpack(a)
        a("s_barrier")
        normalize(a, 0); pack(a)
        for (k, st, sb) in outs:
            if st == 2: store(k, sb)

def publish(a, pfx, tag, s_flagoff, s_val):
    a("s_waitcnt vmcnt(0)")
    a("s_barrier")
    a(f"""
    s_cmp_eq_u32 s22, 0
    s_cbranch_scc0 {pfx}_np_{tag}
    v_mov_b32 v250, {s_val}
    v_mov_b32 v251, 0
    s_mov_b64 exec, 1
    buffer_store_dword v250, v251, s[8:11], {s_flagoff} offen sc1
    s_mov_b64 exec, -1
    """)
    a.label(f"{pfx}_np_{tag}")

def poll_line(a, pfx, tag, s_off, nwords, stride, s_need, timeout, vt=250):
    a(f"""
    v_and_b32 v{vt}, 63, v0
    v_min_u32 v{vt}, {nwords-1}, v{vt}
    v_mul_u32_u24 v{vt}, {stride}, v{vt}
    s_mov_b32 s90, 0
    """)
    a.label(f"{pfx}_pl_{tag}")
    a(f"""
    buffer_load_dword v{vt+1}, v{vt}, s[8:11], {s_off} offen sc1
    s_add_u32 s90, s90, 1
    s_cmp_gt_u32 s90, {POLL_LIMIT}
    s_cbranch_scc1 {timeout}
    s_waitcnt vmcnt(0)
    v_cmp_gt_u32 vcc, {s_need}, v{vt+1}
    s_cbranch_vccz {pfx}_pl_ok_{tag}
    s_sleep {SLEEP[0]}
    s_branch {pfx}_pl_{tag}
    """)
    a.label(f"{pfx}_pl_ok_{tag}")

def role_lnln(a, pfx, s_par, nseg=64, step=2):
    TO = f"{pfx}_timeout"
    ln_setup(a)
    a(f"s_mov_b32 s43, {s_par}")
    a(f"s_and_b32 s44, {s_par}, 1"); a("s_lshl_b32 s45, s44, 12"); a(f"s_add_u32 s45, s45, {FLG(FL_H)}")
    a("s_lshl_b32 s46, s44, 7"); a(f"s_add_u32 s46, s46, {FLG(FL_D)}")
    a.label(f"{pfx}_loop")
    a("s_add_u32 s47, s43, 1")
    poll_line(a, pfx, "h", "s45", 32, 128, "s47", TO)
    a(f"s_mul_i32 s48, s43, 36864")
    a(f"s_add_u32 s49, s48, {WS_HROW}"); a(f"s_add_u32 s50, s48, {WS_LNH}"); a(f"s_add_u32 s51, s48, {WS_XN2F}")
    ln_segment(a, "s[8:11]", "s49", [('row', 1, "s50"), ('f32', 2, "s51")], double=True)
    publish(a, pfx, "d", "s46", "s47")
    trace(a, f"{pfx}_seg", "s89", "s43")
    a(f"s_add_u32 s43, s43, {step}"); a(f"s_cmp_lt_u32 s43, {nseg}"); a(f"s_cbranch_scc1 {pfx}_loop")
    a.label(TO)

def role_ln3(a, pfx, s_par, nseg=64, step=NGRP):
    TO = f"{pfx}_timeout"
    ln_setup(a)
    a(f"s_mov_b32 s43, {s_par}")
    a(f"s_mov_b32 s44, {s_par}")
    a(f"s_mov_b32 s45, {FLG(FL_F)}")
    a("s_lshl_b32 s46, s44, 7"); a(f"s_add_u32 s46, s46, {FLG(FL_G)}")
    a.label(f"{pfx}_loop")
    a("s_add_u32 s47, s43, 1")
    poll_line(a, pfx, "f", "s45", 5, 128, "s47", TO)
    a(f"s_mul_i32 s48, s43, 36864")
    a(f"s_add_u32 s49, s48, {WS_X1}"); a(f"s_add_u32 s51, s48, {WS_XN3F}")
    ln_segment(a, "s[8:11]", "s49", [('f16', 1, "s51")])
    publish(a, pfx, "g", "s46", "s47")
    trace(a, f"{pfx}_seg", "s89", "s43")
    a(f"s_add_u32 s43, s43, {step}"); a(f"s_cmp_lt_u32 s43, {nseg}"); a(f"s_cbranch_scc1 {pfx}_loop")
    a.label(TO)

def role_ln1(a, pfx, s_seg):
    ln_setup(a)
    a(f"s_mul_i32 s49, {s_seg}, 36864"); a(f"s_add_u32 s51, s49, {WS_XNF}")
    ln_segment(a, "s[4:7]", "s49", [('f32', 1, "s51")], sc="")
    a(f"s_lshl_b32 s46, {s_seg}, 7"); a(f"s_add_u32 s46, s46, {FLG(FL_LN1)}")
    a("s_mov_b32 s47, 1")
    publish(a, pfx, "l1", "s46", "s47")
```

```python
from common import *
from r_ln import poll_line
from r_proj import gelu, C1, C2
import r_attn

XB = 0; FX = 36864; ROWB_ = 40960 + 12288
W3V = 80
def w3reg(tt, ks):
    i = tt*18 + ks
    return f"v[{W3V+4*i}:{W3V+4*i+3}]" if i < 44 else f"a[{216+4*(i-44)}:{216+4*(i-44)+3}]"
def w3pair(tt, ks, half):
    i = tt*18 + ks
    if i < 44: return f"v[{W3V+4*i+2*half}:{W3V+4*i+2*half+1}]"
    return f"a[{216+4*(i-44)+2*half}:{216+4*(i-44)+2*half+1}]"

def preload_w3(a, s_colbytes):
    PRE = 81920
    a(f"""
    v_and_b32 v1, 63, v0
    v_lshrrev_b32 v2, 6, v0
    """)
    for i in range(3):
        a(f"""
        v_mul_u32_u24 v3, 192, v2
        v_add_u32 v3, {64*i}, v3
        v_add_u32 v3, v3, v1
        v_mul_u32_u24 v4, 2731, v3
        v_lshrrev_b32 v4, 16, v4                ; /24
        v_mul_u32_u24 v5, 24, v4
        v_sub_u32 v5, v3, v5
        v_mul_u32_u24 v4, 9216, v4
        v_lshl_add_u32 v4, v5, 4, v4
        v_add_u32 v{8+i}, {s_colbytes}, v4
        """)
    a(f"""
    v_lshrrev_b32 v3, 4, v1
    v_bfe_u32 v4, v1, 2, 2
    v_and_b32 v5, 3, v1
    v_lshl_add_u32 v6, v3, 3, v4
    v_mul_u32_u24 v6, 384, v6
    v_mul_u32_u24 v7, 96, v2
    v_add_u32 v6, v6, v7
    v_lshl_add_u32 v6, v5, 3, v6
    v_add_u32 v6, {PRE}, v6
    s_mul_i32 s24, s22, 3072
    """)
    def dma(ks):
        b = ks % 4
        a(f"s_mov_b32 s25, {ks*32*9216}")
        for i in range(3):
            a(f"s_add_u32 m0, s24, {PRE + b*12288 + 1024*i}")
            a(f"buffer_load_dwordx4 v{8+i}, s[16:19], s25 offen lds")
    for ks in range(3): dma(ks)
    for ks in range(18):
        rem = min(2, 17 - ks)
        a(f"s_waitcnt vmcnt({3*rem})")
        a("s_barrier")
        if ks + 3 < 18: dma(ks + 3)
        b = ks % 4
        for tt in range(3):
            a(f"ds_read_b64_tr_b16 {w3pair(tt, ks, 0)}, v6 offset:{b*12288 + 32*tt}")
            a(f"ds_read_b64_tr_b16 {w3pair(tt, ks, 1)}, v6 offset:{b*12288 + 32*tt + 4*384}")
        a("s_waitcnt lgkmcnt(0)")
    a("s_barrier")

def role_mlp(a, pfx, s_m, s_par, nseg=64, step=NGRP, flush=False):
    TO = f"{pfx}_timeout"
    a("v_lshrrev_b32 v2, 6, v0"); a("s_nop 0"); a("v_readfirstlane_b32 s22, v2")
    a(f"s_mul_i32 s40, {s_m}, {192*1152}")
    r_attn.preload_wo_like(a, pfx, "s40", 192, 1152, 6)
    a(f"s_mul_i32 s40, {s_m}, 384")
    preload_w3(a, "s40")
    CS = 68
    for r in range(4): a(f"v_mov_b32 v{16+r}, 0x3f803f80")
    for ks in range(18):
        for tt in range(3):
            c = "0" if ks == 0 else f"v[{CS+4*tt}:{CS+4*tt+3}]"
            a(f"v_mfma_f32_16x16x32_bf16 v[{CS+4*tt}:{CS+4*tt+3}], {w3reg(tt, ks)}, v[16:19], {c}")
    L = Cnt(a, "lgkmcnt", 15)
    XB1 = 36864; FXo = 73728; RB = FXo + 12288
    def lane_setup():
        a(f"""
        v_and_b32 v1, 63, v0
        v_lshrrev_b32 v2, 6, v0
        v_lshlrev_b32 v3, 4, v1                  ; lane*16
        v_mul_u32_u24 v4, 9216, v2
        v_add_u32 v4, v4, v3
        v_and_b32 v6, 15, v1                     ; n
        v_lshrrev_b32 v7, 4, v1                  ; g
        v_mul_u32_u24 v8, 1152, v6
        v_mul_u32_u24 v9, 288, v2
        v_add_u32 v8, v8, v9
        v_lshl_add_u32 v9, v7, 3, v8
        v_add_u32 v9, 256, v9
        v_lshl_add_u32 v8, v7, 4, v8
        v_add_u32 v5, {FXo}, v3
        v_mul_u32_u24 v11, 40, v6
        v_mov_b32 v10, {f32(C1)}
        """)
    a(f"""
    s_mov_b32 s43, {s_par}
    s_mov_b32 s44, 0
    s_mov_b32 s41, {f32(C2)}
    ; reducer: global wave W = 4m + w -> row W/3, first tile 3*(W%3)
    s_lshl_b32 s60, {s_m}, 2
    s_add_u32 s60, s60, s22
    s_mul_hi_u32 s61, s60, 0x55555556        ; row
    s_mul_i32 s62, s61, 3
    s_sub_u32 s62, s60, s62
    s_mul_i32 s62, s62, 3                    ; T0
    """)
    def wait_f(tag, s_seg, blocking):
        a(f"s_and_b32 s50, {s_seg}, 1"); a("s_mul_i32 s51, s50, 640"); a(f"s_add_u32 s51, s51, {FLG(FL_F)}")
        a(f"s_add_u32 s52, {s_seg}, 1")
        poll_line(a, pfx, tag, "s51", 5, 128, "s52", TO, vt=66)
    def dma_x(s_seg, s_buf):
        a(f"s_mul_i32 s48, {s_seg}, 36864"); a(f"s_add_u32 s48, s48, {WS_XN3F}")
        a(f"s_mul_i32 s26, s22, 9216"); a(f"s_add_u32 s26, s26, {s_buf}")
        for j in range(3):
            a(f"s_add_u32 m0, s26, {4096*j}")
            a(f"s_add_u32 s32, s48, {4096*j}")
            for i in range(4 if j < 2 else 1):
                a(f"buffer_load_dwordx4 v4, s[8:11], s32 offen offset:{1024*i} sc1 lds")
    LOOP = f"{pfx}_loop"
    a.label(LOOP)
    trace_at(a, f"{pfx}_top", "s43", TSEG[0], 102, vt=66)
    lane_setup()
    if flush:
        a(f"s_add_u32 s50, s43, {step}"); a(f"s_cmp_ge_u32 s50, {nseg}"); a(f"s_cbranch_scc0 {pfx}_nofl")
        a(f"s_cmp_eq_u32 {s_m}, 0"); a(f"s_cbranch_scc0 {pfx}_nofl")
        a("s_cmp_eq_u32 s22, 3"); a(f"s_cbranch_scc0 {pfx}_nofl")
        a("buffer_wbl2 sc1")
        a.label(f"{pfx}_nofl")
    a(f"s_and_b32 s57, s44, 1"); a(f"s_mul_i32 s57, s57, {XB1}")
    wait_f("f", "s43", True)
    trace_at(a, f"{pfx}_m0", "s43", TSEG[0], 103, vt=66)
    dma_x("s43", "s57")
    a(f"s_mul_i32 s49, s43, 1280"); a(f"s_add_u32 s49, s49, {WS_ST}")
    for qt in range(2):
        b = 40 + 10*qt
        a(f"buffer_load_dwordx4 v[{b}:{b+3}], v11, s[8:11], s49 offen offset:{640*qt} sc1")
        a(f"buffer_load_dwordx4 v[{b+4}:{b+7}], v11, s[8:11], s49 offen offset:{640*qt+16} sc1")
        a(f"buffer_load_dwordx2 v[{b+8}:{b+9}], v11, s[8:11], s49 offen offset:{640*qt+32} sc1")
    a("v_add_u32 v12, s57, v3")
    a("s_waitcnt vmcnt(0)")
    MS = 12
    for qt in range(2):
        b = 40 + 10*qt; d = (64, 38)[qt]
        a(f"v_pk_add_f32 v[{b}:{b+1}], v[{b}:{b+1}], v[{b+2}:{b+3}]")
        a(f"v_pk_add_f32 v[{b+4}:{b+5}], v[{b+4}:{b+5}], v[{b+6}:{b+7}]")
        a(f"v_pk_add_f32 v[{b}:{b+1}], v[{b}:{b+1}], v[{b+8}:{b+9}]")
        a(f"v_pk_add_f32 v[{b}:{b+1}], v[{b}:{b+1}], v[{b+4}:{b+5}]")
        a(f"v_mul_f32 v{d}, {f32(1.0/576)}, v{b}")
        a(f"v_mul_f32 v{d+1}, {f32(1.0/576)}, v{b+1}")
        a(f"v_fma_f32 v{d+1}, -v{d}, v{d}, v{d+1}")
        a(f"v_max_f32 v{d+1}, 0, v{d+1}")
        a(f"v_add_f32 v{d+1}, {f32(1e-5)}, v{d+1}")
        a(f"v_rsq_f32 v{d+1}, v{d+1}")
    a("s_barrier")
    trace_at(a, f"{pfx}_m1", "s43", TSEG[0], 104, vt=66)
    L.reset()
    ACC = [40, 52]
    RING = [16, 20, 24, 28]
    from collections import deque
    def fepi(qt):
        out = []; I = lambda t: out.append(lambda: a(t))
        A = ACC[qt]; T = 32 if False else None
        mean, rstd = ((64, 65), (38, 39))[qt]
        for tt in range(3):
            regs = [A + 4*tt + r for r in range(4)]; t0 = 32
            for i, r in enumerate(regs): I(f"v_fma_f32 v{r}, -v{mean}, v{CS+4*tt+i}, v{r}")
            for i, r in enumerate(regs): I(f"v_mul_f32 v{r}, v{r}, v{rstd}")
            for i, r in enumerate(regs): I(f"v_mul_f32 v{t0+i}, v{r}, v{r}")
            for i, r in enumerate(regs): I(f"v_fma_f32 v{t0+i}, v{t0+i}, s41, v10")
            for i, r in enumerate(regs): I(f"v_mul_f32 v{t0+i}, v{t0+i}, v{r}")
            for i, r in enumerate(regs): I(f"v_exp_f32 v{t0+i}, v{t0+i}")
            for i, r in enumerate(regs): I(f"v_add_f32 v{t0+i}, 1.0, v{t0+i}")
            for i, r in enumerate(regs): I(f"v_rcp_f32 v{t0+i}, v{t0+i}")
            for i, r in enumerate(regs): I(f"v_mul_f32 v{r}, v{r}, v{t0+i}")
            I(f"v_cvt_pk_bf16_f32 v36, v{regs[0]}, v{regs[1]}")
            I(f"v_cvt_pk_bf16_f32 v37, v{regs[2]}, v{regs[3]}")
            I(f"v_add_u32 v4, s{53+tt}, v5")
            out.append(lambda qt=qt: L.issue(f"ds_write_b64 v4, v[36:37] offset:{qt*6144}"))
        return out
    for tt in range(3):
        a(f"s_mul_i32 s49, s22, 3"); a(f"s_add_u32 s49, s49, {tt}")
        a("s_lshr_b32 s50, s49, 1"); a("s_lshl_b32 s50, s50, 10"); a("s_and_b32 s49, s49, 1"); a("s_lshl_b32 s49, s49, 3"); a(f"s_add_u32 s{53+tt}, s50, s49")
    order = [(qt, ks) for qt in range(2) for ks in range(18)]
    tok = {}
    def rd(j):
        qt, ks = order[j]; r = RING[j % 4]
        tok[j] = L.issue(f"ds_read_b128 v[{r}:{r+3}], v12 offset:{ks*2048 + qt*1024}")
    for j in range(3): rd(j)
    fill = deque()
    for j, (qt, ks) in enumerate(order):
        if j + 3 < 36: rd(j + 3)
        L.wait(tok[j])
        r = RING[j % 4]
        for tt in range(3):
            acc = ACC[qt] + 4*tt
            c = "0" if ks == 0 else f"v[{acc}:{acc+3}]"
            a(f"v_mfma_f32_16x16x32_bf16 v[{acc}:{acc+3}], {w3reg(tt, ks)}, v[{r}:{r+3}], {c}")
            if j == 19 and tt == 0: fill.extend(fepi(0))
            for _ in range(2):
                if fill: fill.popleft()()
    while fill: fill.popleft()()
    L.drain()
    a("s_barrier")
    trace_at(a, f"{pfx}_m2", "s43", TSEG[0], 105, vt=66)
    a(f"s_and_b32 s58, s44, 1"); a(f"s_mul_i32 s58, s58, {P5_SLOT}")
    a(f"s_mul_i32 s59, {s_par}, {2*P5_SLOT}")
    a("s_add_u32 s58, s58, s59"); a(f"s_add_u32 s58, s58, {WS_P5}")
    a(f"s_mul_i32 s59, {s_m}, 36864"); a("s_add_u32 s59, s59, s58")
    for qt in range(2):
        L.reset()
        OF = [16, 20, 24, 28, 40, 44] if qt == 0 else [16, 20, 24, 28, 32, 36]
        tk = [L.issue(f"ds_read_b128 v[{OF[k]}:{OF[k]+3}], v5 offset:{qt*6144 + k*1024}") for k in range(6)]
        if qt == 0:
            fill = deque(fepi(1))
            sets = [(48, None, None)]
        else:
            a("s_add_u32 s59, s59, %d" % (16*1152)); fill = deque()
        accs = [48, 12] if qt == 0 else [40, 44]
        def mm(j, acc):
            for kap in range(6):
                L.wait(tk[kap])
                c = "0" if kap == 0 else f"v[{acc}:{acc+3}]"
                r = (j*6 + kap)*4
                a(f"v_mfma_f32_16x16x32_bf16 v[{acc}:{acc+3}], a[{r}:{r+3}], v[{OF[kap]}:{OF[kap]+3}], {c}")
                for _ in range(2):
                    if fill: fill.popleft()()
        PKR = [64, 65, 66, 67] if qt == 0 else [48, 49, 50, 51]
        def cv(j):
            acc = accs[j % 2]; h = j % 2 if j < 8 else 0
            a(f"v_cvt_pk_bf16_f32 v{PKR[2*h]}, v{acc}, v{acc+1}"); a(f"v_cvt_pk_bf16_f32 v{PKR[2*h+1]}, v{acc+2}, v{acc+3}")
            if j < 8 and h == 1: a(f"buffer_store_dwordx4 v[{PKR[0]}:{PKR[3]}], v8, s[8:11], s59 offen offset:{64*(j//2)}")
            if j == 8: a(f"buffer_store_dwordx2 v[{PKR[0]}:{PKR[1]}], v9, s[8:11], s59 offen")
        for j in range(9):
            mm(j, accs[j % 2])
            if j > 0: cv(j - 1)
        while fill: fill.popleft()()
        cv(8)
        if qt == 0:
            L.drain(); a("s_barrier")
    a("s_waitcnt vmcnt(0)")
    a("s_barrier")
    trace_at(a, f"{pfx}_m3", "s43", TSEG[0], 106, vt=66)
    a(f"s_and_b32 s71, s44, 1"); a(f"s_lshl_b32 s72, {s_par}, 1"); a("s_add_u32 s71, s71, s72")
    a("s_lshl_b32 s71, s71, 7"); a(f"s_add_u32 s71, s71, {FLG(FL_P5)}")
    a("s_add_u32 s72, s43, 1")
    a(f"""
    s_cmp_eq_u32 s22, 0
    s_cbranch_scc0 {pfx}_nopub
    v_mov_b32 v16, s72
    s_lshl_b32 s73, {s_m}, 2
    v_mov_b32 v17, s73
    s_mov_b64 exec, 1
    buffer_store_dword v16, v17, s[8:11], s71 offen
    s_mov_b64 exec, -1
    """)
    a.label(f"{pfx}_nopub")
    a(f"""
    v_lshrrev_b32 v16, 2, v6                 ; g'
    v_and_b32 v17, 1, v6                     ; ul
    v_bfe_u32 v18, v6, 1, 1                  ; pg
    v_lshl_add_u32 v19, v16, 1, v17
    v_lshl_add_u32 v20, v7, 1, v18
    v_mul_u32_u24 v14, 36864, v20
    v_lshl_add_u32 v14, v19, 4, v14
    s_mul_i32 s50, s61, 1152
    v_lshlrev_b32 v21, 4, v19
    v_add_u32 v21, s50, v21
    v_add_u32 v21, {WS_HROW}, v21
    v_lshrrev_b32 v22, 2, v19
    v_lshlrev_b32 v22, 11, v22
    v_and_b32 v23, 3, v19
    v_lshl_add_u32 v22, v23, 8, v22
    s_lshr_b32 s50, s61, 4
    s_lshl_b32 s50, s50, 10
    s_and_b32 s51, s61, 15
    s_lshl_b32 s51, s51, 4
    s_add_u32 s50, s50, s51
    v_add_u32 v22, s50, v22
    v_add_u32 v22, {WS_XN3F}, v22
    v_mov_b32 v23, 0x7fff0000
    v_cmp_eq_u32 vcc, 0, v20
    v_cndmask_b32 v15, v23, v21, vcc
    v_mov_b32 v13, 128
    v_cmp_eq_u32 vcc, 1, v20
    v_cndmask_b32 v15, v15, v22, vcc
    v_mov_b32 v24, 4096
    v_cndmask_b32 v13, v13, v24, vcc
    v_and_b32 v16, 1, v1
    v_lshlrev_b32 v16, 4, v16
    v_mov_b32 v17, 0x3f80
    v_lshlrev_b32 v16, v16, v17
    v_bfe_u32 v17, v1, 1, 2
    """)
    SEL = 64
    for r in range(4):
        a(f"v_cmp_eq_u32 vcc, {r}, v17")
        a(f"v_cndmask_b32 v{SEL+r}, 0, v16, vcc")
    a(f"""
    v_mad_u32_u24 v15, v13, s62, v15
    s_mul_i32 s74, s61, 1152
    s_add_u32 s74, s74, s58
    s_lshl_b32 s75, s62, 7
    s_add_u32 s74, s74, s75
    s_mul_i32 s76, s43, 36864
    v_and_b32 v17, 63, v0
    v_min_u32 v17, 23, v17
    v_lshlrev_b32 v17, 2, v17
    s_mov_b32 s73, 0
    """)
    a.label(f"{pfx}_p5poll")
    a(f"""
    buffer_load_dword v16, v17, s[8:11], s71 offen sc1
    s_add_u32 s73, s73, 1
    s_cmp_gt_u32 s73, {POLL_LIMIT}
    s_cbranch_scc1 {TO}
    s_waitcnt vmcnt(0)
    v_cmp_ne_u32 vcc, s72, v16
    s_cbranch_vccnz {pfx}_p5poll
    """)
    trace_at(a, f"{pfx}_m4", "s43", TSEG[0], 107, vt=8)
    for q in range(3):
        for jj in range(3):
            a(f"s_add_u32 s77, s74, {128*q + jj*8*36864}")
            a(f"buffer_load_dwordx4 v[{16+16*q+4*jj}:{19+16*q+4*jj}], v14, s[8:11], s77 offen sc1")
        a(f"buffer_load_dwordx4 v[{28+16*q}:{31+16*q}], v15, s[8:11], s76 offen sc1")
        if q < 2: a("v_add_u32 v15, v15, v13")
    a(f"""
    v_and_b32 v12, 7, v1
    v_lshl_add_u32 v12, v7, 4, v12
    v_lshlrev_b32 v12, 1, v12
    s_mul_i32 s50, s22, 384
    s_add_u32 s50, s50, {RB}
    v_add_u32 v12, s50, v12
    """)
    RACC = [8, 16, 20]
    for q in range(3):
        for k in range(4):
            a(f"s_waitcnt vmcnt({11 - 4*q - k})")
            acc = RACC[q]; r = 16 + 16*q + 4*k
            c = "0" if k == 0 else f"v[{acc}:{acc+3}]"
            a(f"v_mfma_f32_16x16x32_bf16 v[{acc}:{acc+3}], v[{r}:{r+3}], v[{SEL}:{SEL+3}], {c}")
    for q in range(3):
        acc = RACC[q]
        a(f"v_pk_add_f32 v[{acc}:{acc+1}], v[{acc}:{acc+1}], v[{acc+2}:{acc+3}]")
        a(f"v_cvt_pk_bf16_f32 v{acc}, v{acc}, v{acc+1}")
        a(f"ds_write_b16 v12, v{acc} offset:{128*q}")
        a(f"ds_write_b16_d16_hi v12, v{acc} offset:{128*q + 16}")
    a(f"""
    s_waitcnt lgkmcnt(0)
    v_lshlrev_b32 v12, 4, v1
    s_mul_i32 s50, s22, 384
    s_add_u32 s50, s50, {RB}
    v_add_u32 v13, s50, v12
    ds_read_b128 v[16:19], v13
    v_mov_b32 v14, 0x7fff0000
    v_cmp_gt_u32 vcc, 24, v1
    v_cndmask_b32 v12, v14, v12, vcc
    s_lshl_b32 s75, s43, 5
    s_add_u32 s75, s75, s61
    s_mul_i32 s75, s75, 1152
    s_lshl_b32 s50, s62, 7
    s_add_u32 s75, s75, s50
    s_waitcnt lgkmcnt(0)
    buffer_store_dwordx4 v[16:19], v12, s[4:7], s75 offen
    """)
    trace(a, f"{pfx}_seg", "s89", "s43", vt=12)
    a(f"s_add_u32 s43, s43, {step}"); a("s_add_u32 s44, s44, 1")
    a(f"s_cmp_lt_u32 s43, {nseg}"); a(f"s_cbranch_scc1 {LOOP}")
    a.label(TO)
    a("s_waitcnt vmcnt(0)")
```

```python
from common import *
from r_ln import poll_line

XB0 = 0; XB1 = 36864; STG = 73728
C1 = -2.0*1.4426950408889634*0.7978845608028654
C2 = C1*0.044715

def gelu(a, regs, t0, sC1, sC2):
    n = len(regs)
    for i, r in enumerate(regs): a(f"v_mul_f32 v{t0+i}, v{r}, v{r}")
    for i, r in enumerate(regs): a(f"v_fma_f32 v{t0+i}, v{t0+i}, s{sC2}, v{sC1}" if False else f"v_fma_f32 v{t0+i}, v{t0+i}, s{sC2}, v{sC1}")
    for i, r in enumerate(regs): a(f"v_mul_f32 v{t0+i}, v{t0+i}, v{r}")
    for i, r in enumerate(regs): a(f"v_exp_f32 v{t0+i}, v{t0+i}")
    for i, r in enumerate(regs): a(f"v_add_f32 v{t0+i}, 1.0, v{t0+i}")
    for i, r in enumerate(regs): a(f"v_rcp_f32 v{t0+i}, v{t0+i}")
    for i, r in enumerate(regs): a(f"v_mul_f32 v{r}, v{r}, v{t0+i}")

def preload_w128(a, pitch, s_colbytes, dest=None):
    a(f"""
    v_and_b32 v1, 63, v0
    v_lshrrev_b32 v2, 6, v0
    s_nop 0
    v_readfirstlane_b32 s22, v2
    v_lshrrev_b32 v3, 4, v1                  ; l>>4
    v_and_b32 v4, 15, v1
    v_lshl_add_u32 v5, v2, 2, v3
    v_mul_u32_u24 v5, {pitch}, v5
    v_lshlrev_b32 v6, 2, v3
    v_xor_b32 v6, v4, v6
    v_lshl_add_u32 v5, v6, 4, v5
    v_add_u32 v5, {s_colbytes}, v5
    v_lshrrev_b32 v6, 1, v3                  ; hi
    v_and_b32 v7, 1, v3                      ; nh
    v_lshrrev_b32 v8, 2, v4                  ; rho
    v_and_b32 v9, 3, v1                      ; c4
    v_lshl_add_u32 v10, v6, 3, v8
    v_lshlrev_b32 v10, 8, v10
    v_lshlrev_b32 v11, 2, v2
    v_lshl_add_u32 v11, v7, 1, v11
    v_lshrrev_b32 v12, 1, v9
    v_add_u32 v11, v11, v12
    v_lshlrev_b32 v12, 2, v8
    v_xor_b32 v11, v11, v12
    v_lshl_add_u32 v10, v11, 4, v10
    v_and_b32 v12, 1, v9
    v_lshl_add_u32 v10, v12, 3, v10
    v_add_u32 v10, {STG}, v10
    s_lshl_b32 s24, s22, 10
    """)
    def dma_chunk(c):
        b = c % 4
        for m in range(4):
            a(f"s_add_u32 m0, s24, {STG + b*16384 + m*4096}")
            a(f"s_mov_b32 s25, {(64*c + 16*m)*pitch}")
            a(f"buffer_load_dwordx4 v5, s[12:15], s25 offen lds")
    for c in range(3): dma_chunk(c)
    for c in range(9):
        rem = min(2, 8 - c)
        a(f"s_waitcnt vmcnt({4*rem})")
        a("s_barrier")
        if c + 3 < 9: dma_chunk(c + 3)
        b = c % 4
        for kk in range(4):
            for half in range(2):
                kind, ar = dest(4*c + kk) if dest else ('a', 4*(4*c + kk))
                ar += 2*half
                a(f"ds_read_b64_tr_b16 {kind}[{ar}:{ar+1}], v10 offset:{b*16384 + kk*4096 + half*1024}")
        a("s_waitcnt lgkmcnt(0)")

def stage128(a, pfx, kinds, s_sel, inp, out_setup, wait_in, s_flag, nseg=64, pre_wait=None):
    TO = f"{pfx}_timeout"
    a(f"""
    v_lshlrev_b32 v12, 4, v1                 ; lane*16
    v_mul_u32_u24 v13, 9216, v2
    v_add_u32 v13, v13, v12                  ; linear DMA voffset = lane*16 + w*9216
    v_add_u32 v14, {XB1}, v12
    s_mul_i32 s26, s22, 9216
    s_mov_b32 s30, 0
    s_mov_b32 s35, 0
    """)
    out_setup()
    if pre_wait: pre_wait()
    if inp == 'shift':
        a("""
        s_mov_b32 s36, -1
        s_cmp_eq_u32 s22, 1
        s_cselect_b32 s36, 1, s36
        s_cmp_eq_u32 s22, 2
        s_cselect_b32 s36, -2, s36
        s_cmp_eq_u32 s22, 3
        s_cselect_b32 s36, 2, s36
        v_and_b32 v58, 31, v1
        v_add_u32 v58, s36, v58
        v_lshrrev_b32 v59, 5, v1
        v_lshlrev_b32 v59, 4, v59            ; hi*16
        """)
    def dma_x(buf, tag):
        if inp == 'lin':
            for j in range(3):
                a(f"s_add_u32 m0, s26, {buf + 4096*j}")
                a(f"s_add_u32 s32, s29, {4096*j}")
                for i in range(4 if j < 2 else 1):
                    a(f"buffer_load_dwordx4 v13, s[8:11], s32 offen offset:{1024*i} sc1 lds")
            a("s_add_u32 s29, s29, 36864")
        else:
            a(f"""
            s_lshl_b32 s32, s35, 5
            v_add_u32 v60, s32, v58
            v_lshl_add_u32 v61, v60, 5, v59
            v_cmp_gt_u32 vcc, 0x800, v60
            v_mov_b32 v60, 0x7fff0000
            v_cndmask_b32 v61, v60, v61, vcc
            s_mul_i32 s32, s22, {9*65536}
            s_add_u32 s32, s32, {WS_GF}
            """)
            for i in range(9):
                a(f"s_add_u32 m0, s26, {buf + 1024*i}")
                if i: a("s_add_u32 s32, s32, 65536")
                a(f"buffer_load_dwordx4 v61, s[8:11], s32 offen sc1 lds")
        a("s_add_u32 s35, s35, 1")
    def publish(val_sreg, tag):
        lab = f"{pfx}_nopub_{tag}"
        a(f"""
        s_cmp_eq_u32 s22, 0
        s_cbranch_scc0 {lab}
        v_mov_b32 v56, {val_sreg}
        v_mov_b32 v57, 0
        s_mov_b64 exec, 1
        buffer_store_dword v56, v57, s[8:11], {s_flag} offen sc1
        s_mov_b64 exec, -1
        """)
        a.label(lab)
    def seg_body(tag, vaddr, obuf, kind, first):
        nst = kind['nstores']
        a(f"s_waitcnt vmcnt({nst})" if not first else "s_waitcnt vmcnt(0)")
        a("s_barrier")
        if not first:
            a("s_sub_u32 s34, s30, 1")
            publish("s34", tag)
            trace(a, f"{pfx}_{tag}", "s89", "s34")
        lab = f"{pfx}_nodma_{tag}"
        a(f"s_cmp_lt_u32 s35, s92")
        a(f"s_cbranch_scc0 {lab}")
        dma_x(obuf, tag)
        a.label(lab)
        kind['pre']()
        NR = 4
        for k in range(NR - 1):
            a(f"ds_read_b128 v[{16+4*k}:{19+4*k}], v{vaddr} offset:{k*1024}")
        for ks in range(36):
            if ks + NR - 1 < 36:
                r = 16 + 4*((ks + NR - 1) % NR)
                a(f"ds_read_b128 v[{r}:{r+3}], v{vaddr} offset:{(ks+NR-1)*1024}")
                a(f"s_waitcnt lgkmcnt({NR-1})")
            else:
                a(f"s_waitcnt lgkmcnt({35-ks})")
            r = 16 + 4*(ks % NR)
            c = "0" if ks == 0 else "v[32:47]"
            if kind['isv']: a(f"v_mfma_f32_32x32x16_bf16 v[32:47], v[{r}:{r+3}], a[{4*ks}:{4*ks+3}], {c}")
            else:           a(f"v_mfma_f32_32x32x16_bf16 v[32:47], a[{4*ks}:{4*ks+3}], v[{r}:{r+3}], {c}")
        kind['epi'](tag)
        a("s_add_u32 s30, s30, 1")
        lab2 = f"{pfx}_late_{tag}"
        a("s_cmp_gt_u32 s35, s30"); a(f"s_cbranch_scc1 {lab2}")
        a(f"s_cmp_ge_u32 s35, {nseg}"); a(f"s_cbranch_scc1 {lab2}")
        wait_in("l" + tag, "s35")
        dma_x(obuf, "l" + tag)
        a("s_waitcnt vmcnt(0)")
        a.label(lab2)
    for t, kind in enumerate(kinds):
        L = f"{pfx}_loop_{t}"
        if len(kinds) > 1:
            if t == 0:
                a(f"s_cmp_eq_u32 {s_sel}, 1"); a(f"s_cbranch_scc1 {pfx}_entry_1")
            else:
                a.label(f"{pfx}_entry_1")
        wait_in(f"i{t}", "s35")
        dma_x(XB0, f"i{t}")
        seg_body(f"p{t}", 12, XB1, kind, True)
        a.label(L)
        seg_body(f"a{t}", 14, XB0, kind, False)
        a(f"s_cmp_ge_u32 s30, {nseg}")
        a(f"s_cbranch_scc1 {pfx}_done_{t}")
        seg_body(f"b{t}", 12, XB1, kind, False)
        a(f"s_cmp_lt_u32 s30, {nseg}")
        a(f"s_cbranch_scc1 {L}")
        a.label(f"{pfx}_done_{t}")
        a("s_waitcnt vmcnt(0)")
        a("s_barrier")
        a(f"s_mov_b32 s34, {nseg}")
        publish("s34", f"end{t}")
        trace(a, f"{pfx}_end{t}", "s89", "s34")
        a(f"s_branch {TO}")
    a.label(TO)

def pack_swap(a):
    for q in range(4):
        a(f"v_cvt_pk_bf16_f32 v{48+2*q}, v{32+4*q}, v{33+4*q}")
        a(f"v_cvt_pk_bf16_f32 v{49+2*q}, v{34+4*q}, v{35+4*q}")
    for q0 in (0, 2):
        a(f"v_permlane32_swap_b32 v{48+2*q0}, v{50+2*q0}")
        a(f"v_permlane32_swap_b32 v{49+2*q0}, v{51+2*q0}")

def role_proj(a, pfx, s_type, s_h, nseg=64, pre_wait=None):
    a(f"s_lshl_b32 s23, {s_h}, 8")
    preload_w128(a, 8192, "s23")
    def out_setup():
        a(f"""
        v_and_b32 v15, 31, v1
        v_lshrrev_b32 v15, 4, v15
        v_lshlrev_b32 v15, 10, v15
        v_lshrrev_b32 v6, 5, v1
        v_lshl_add_u32 v6, v6, 4, v4
        v_lshl_add_u32 v15, v6, 4, v15
        v_lshl_add_u32 v15, v2, 11, v15
        s_lshl_b32 s27, {s_type}, 24
        s_add_u32 s27, s27, {WS_QB}
        s_lshl_b32 s28, {s_h}, 13
        s_add_u32 s27, s27, s28
        s_mov_b32 s29, {WS_XNF}
        s_lshl_b32 s31, {s_type}, 5
        s_add_u32 s31, s31, {s_h}
        s_lshl_b32 s31, s31, 7
        s_add_u32 s31, s31, {WS_FLG}
        s_mov_b32 s33, {f32(QSCALE)}
        s_cmp_eq_u32 {s_type}, 0
        s_cselect_b32 s33, s33, 1.0
        s_lshr_b32 s37, {s_type}, 1              ; 1 for V
        s_mov_b32 s38, 0
        """)
    def stores():
        a("buffer_store_dwordx4 v[48:51], v15, s[8:11], s27 offen sc1")
        a("buffer_store_dwordx4 v[52:55], v15, s[8:11], s27 offen offset:512 sc1")
        a("s_add_u32 s27, s27, %d" % (32*8192))
    def epi_qk(tag):
        for k in range(16): a(f"v_mul_f32 v{32+k}, s33, v{32+k}")
        pack_swap(a); stores()
    def epi_v(tag):
        for q in range(2):
            a(f"v_cvt_pk_bf16_f32 v{48+4*q}, v{32+4*q}, v{33+4*q}")
            a(f"v_cvt_pk_bf16_f32 v{49+4*q}, v{34+4*q}, v{35+4*q}")
            a(f"v_cvt_pk_bf16_f32 v{50+4*q}, v{40+4*q}, v{41+4*q}")
            a(f"v_cvt_pk_bf16_f32 v{51+4*q}, v{42+4*q}, v{43+4*q}")
        stores()
    def wait_in(tag, s_seg):
        a(f"s_mov_b32 s39, {FLG(FL_LN1)}")
        a("s_mov_b32 s91, 1")
        poll_line(a, pfx, "ln" + tag, "s39", 64, 128, "s91", f"{pfx}_timeout")
        a(f"s_mov_b32 s92, {nseg}")
    kinds = [dict(isv=False, nstores=2, pre=lambda: None, epi=epi_qk), dict(isv=True, nstores=2, pre=lambda: None, epi=epi_v)]
    stage128(a, pfx, kinds, "s37", 'lin', out_setup, wait_in, "s31", nseg, pre_wait)

def stage_ll(a, pfx, inp, setup, wait_in, pre, epi, s_flag, s_start, step, nseg=64, pre_wait=None):
    TO = f"{pfx}_timeout"
    a(f"""
    v_lshlrev_b32 v12, 4, v1                 ; lane*16
    v_mul_u32_u24 v13, 9216, v2
    v_add_u32 v13, v13, v12                  ; linear DMA voffset
    s_mul_i32 s26, s22, 9216
    s_mov_b32 s30, {s_start}
    """)
    setup()
    if inp == 'shift':
        a("""
        s_mov_b32 s36, -1
        s_cmp_eq_u32 s22, 1
        s_cselect_b32 s36, 1, s36
        s_cmp_eq_u32 s22, 2
        s_cselect_b32 s36, -2, s36
        s_cmp_eq_u32 s22, 3
        s_cselect_b32 s36, 2, s36
        v_and_b32 v58, 31, v1
        v_add_u32 v58, s36, v58
        v_lshrrev_b32 v59, 5, v1
        v_lshlrev_b32 v59, 4, v59            ; hi*16
        """)
    if pre_wait: pre_wait()
    a.label(f"{pfx}_loop")
    wait_in()
    trace_at(a, f"{pfx}_in", "s30", TSEG[0], 102)
    if inp == 'lin':
        a(f"s_mul_i32 s29, s30, 36864"); a(f"s_add_u32 s29, s29, {WS_XN2F}")
        for j in range(3):
            a(f"s_add_u32 m0, s26, {4096*j}")
            a(f"s_add_u32 s32, s29, {4096*j}")
            for i in range(4 if j < 2 else 1):
                a(f"buffer_load_dwordx4 v13, s[8:11], s32 offen offset:{1024*i} sc1 lds")
    else:
        a(f"""
        s_lshl_b32 s32, s30, 5
        v_add_u32 v60, s32, v58
        v_lshl_add_u32 v61, v60, 5, v59
        v_cmp_gt_u32 vcc, 0x800, v60
        v_mov_b32 v60, 0x7fff0000
        v_cndmask_b32 v61, v60, v61, vcc
        s_mul_i32 s32, s22, {9*65536}
        s_add_u32 s32, s32, {WS_GF}
        """)
        for i in range(9):
            a(f"s_add_u32 m0, s26, {1024*i}")
            if i: a("s_add_u32 s32, s32, 65536")
            a(f"buffer_load_dwordx4 v61, s[8:11], s32 offen sc1 lds")
    npre = pre()
    a(f"s_waitcnt vmcnt({npre})")
    a("s_barrier")
    trace_at(a, f"{pfx}_dma", "s30", TSEG[0], 103)
    NR = 4
    for k in range(NR - 1):
        a(f"ds_read_b128 v[{16+4*k}:{19+4*k}], v12 offset:{k*1024}")
    for ks in range(36):
        if ks + NR - 1 < 36:
            r = 16 + 4*((ks + NR - 1) % NR)
            a(f"ds_read_b128 v[{r}:{r+3}], v12 offset:{(ks+NR-1)*1024}")
            a(f"s_waitcnt lgkmcnt({NR-1})")
        else:
            a(f"s_waitcnt lgkmcnt({35-ks})")
        r = 16 + 4*(ks % NR)
        c = "0" if ks == 0 else "v[32:47]"
        a(f"v_mfma_f32_32x32x16_bf16 v[32:47], a[{4*ks}:{4*ks+3}], v[{r}:{r+3}], {c}")
    epi()
    trace_at(a, f"{pfx}_epi", "s30", TSEG[0], 104)
    a("s_waitcnt vmcnt(0)")
    a("s_barrier")
    a(f"""
    s_cmp_eq_u32 s22, 0
    s_cbranch_scc0 {pfx}_nopub
    s_add_u32 s34, s30, 1
    v_mov_b32 v56, s34
    v_mov_b32 v57, 0
    s_mov_b64 exec, 1
    buffer_store_dword v56, v57, s[8:11], {s_flag} offen sc1
    s_mov_b64 exec, -1
    """)
    a.label(f"{pfx}_nopub")
    trace(a, f"{pfx}_seg", "s89", "s30")
    a(f"s_add_u32 s30, s30, {step}"); a(f"s_cmp_lt_u32 s30, {nseg}"); a(f"s_cbranch_scc1 {pfx}_loop")
    a.label(TO)

def role_w1(a, pfx, s_c, s_g, nseg=64, pre_wait=None, natt=3):
    a(f"s_lshl_b32 s23, {s_c}, 8")
    preload_w128(a, 1152, "s23")
    def setup():
        a(f"""
        v_and_b32 v15, 31, v1
        v_lshlrev_b32 v15, 5, v15
        v_lshrrev_b32 v6, 5, v1
        v_lshl_add_u32 v15, v6, 4, v15
        s_lshl_b32 s27, {s_c}, 3
        s_lshl_b32 s28, s22, 1
        s_add_u32 s27, s27, s28
        s_lshl_b32 s27, s27, 16
        s_add_u32 s27, s27, {WS_GF}              ; (8c + 2w)*65536
        s_mul_i32 s31, {s_g}, 5
        s_add_u32 s31, s31, {s_c}
        s_lshl_b32 s31, s31, 7
        s_add_u32 s31, s31, {FLG(FL_E)}
        s_mov_b32 s40, {f32(C2)}
        v_mov_b32 v62, {f32(C1)}
        s_lshl_b32 s28, {s_c}, 2
        s_add_u32 s28, s28, s22
        v_mov_b32 v6, 0x7fff0000
        s_cmp_ge_u32 s28, 18
        s_cbranch_scc0 {pfx}_colok
        v_mov_b32 v15, v6
        """)
        a.label(f"{pfx}_colok")
    def wait_in():
        if natt == 3:
            a(f"s_mul_hi_u32 s39, s30, 0x55555556"); a("s_mul_i32 s39, s39, 3"); a(f"s_sub_u32 s39, s30, s39")
        else: a(f"s_and_b32 s39, s30, {natt-1}")
        a("s_lshl_b32 s39, s39, 12"); a(f"s_add_u32 s39, s39, {FLG(FL_H)}")
        a(f"s_add_u32 s91, s30, 1")
        poll_line(a, pfx, "h", "s39", 32, 128, "s91", f"{pfx}_timeout")
    def epi():
        gelu(a, list(range(32, 48)), 64, 62, 40)
        pack_swap(a)
        a("s_lshl_b32 s28, s30, 10"); a("s_add_u32 s28, s28, s27")
        a("buffer_store_dwordx4 v[48:51], v15, s[8:11], s28 offen sc1")
        a("s_add_u32 s28, s28, 65536")
        a("buffer_store_dwordx4 v[52:55], v15, s[8:11], s28 offen sc1")
    stage_ll(a, pfx, 'lin', setup, wait_in, lambda: 0, epi, "s31", s_g, 2, nseg, pre_wait)

def role_w2(a, pfx, s_c, s_g, nseg=64, pre_wait=None):
    a(f"s_lshl_b32 s23, {s_c}, 8")
    preload_w128(a, 1152, "s23")
    STL = 36864
    def setup():
        a(f"""
        v_and_b32 v15, 31, v1                    ; token
        v_lshrrev_b32 v6, 5, v1                  ; hi
        v_mul_u32_u24 v63, 1152, v15
        s_lshl_b32 s28, {s_c}, 8
        s_lshl_b32 s27, s22, 6
        s_add_u32 s28, s28, s27
        v_add_u32 v63, s28, v63
        v_lshl_add_u32 v63, v6, 3, v63
        v_lshlrev_b32 v74, 3, v15
        v_lshl_add_u32 v74, v2, 8, v74
        v_lshrrev_b32 v7, 4, v15
        v_lshlrev_b32 v7, 10, v7
        v_and_b32 v8, 15, v15
        v_lshl_add_u32 v7, v8, 4, v7
        v_lshl_add_u32 v15, v6, 8, v7            ; + hi*256
        s_lshl_b32 s27, {s_c}, 2
        s_add_u32 s27, s27, s22
        s_mov_b32 s42, s27
        s_lshl_b32 s27, s27, 11
        v_add_u32 v15, s27, v15
        s_mul_i32 s31, {s_g}, 5
        s_add_u32 s31, s31, {s_c}
        s_lshl_b32 s31, s31, 7
        s_add_u32 s31, s31, {FLG(FL_F)}
        v_mov_b32 v6, 0x7fff0000
        s_cmp_ge_u32 s42, 18
        s_cbranch_scc0 {pfx}_colok
        v_mov_b32 v15, v6
        v_mov_b32 v63, v6
        """)
        a.label(f"{pfx}_colok")
        a(f"""
        v_min_u32 v75, 9, v1
        v_cmp_lt_u32 vcc, 4, v75
        v_cndmask_b32 v76, 0, 1, vcc
        v_lshlrev_b32 v75, 7, v75
        v_mul_u32_u24 v77, 40, v0
        s_lshl_b32 s28, {s_c}, 3
        v_add_u32 v77, s28, v77
        v_cmp_gt_u32 vcc, 32, v0
        v_cndmask_b32 v77, v6, v77, vcc
        """)
    def wait_in():
        a(f"""
        s_add_u32 s37, s30, 1
        s_add_u32 s38, s30, 2
        s_cmp_ge_u32 s37, {nseg}
        s_cselect_b32 s38, s30, s38
        s_and_b32 s39, s30, 1
        v_mov_b32 v78, s38
        v_mov_b32 v79, s37
        v_cmp_eq_u32 vcc, s39, v76
        v_cndmask_b32 v78, v78, v79, vcc
        s_mov_b32 s39, {FLG(FL_E)}
        s_mov_b32 s90, 0
        """)
        a.label(f"{pfx}_pe")
        a(f"""
        buffer_load_dword v79, v75, s[8:11], s39 offen sc1
        s_add_u32 s90, s90, 1
        s_cmp_gt_u32 s90, {POLL_LIMIT}
        s_cbranch_scc1 {pfx}_timeout
        s_waitcnt vmcnt(0)
        v_cmp_gt_u32 vcc, v78, v79
        s_cbranch_vccz {pfx}_pe_ok
        s_sleep {SLEEP[0]}
        s_branch {pfx}_pe
        """)
        a.label(f"{pfx}_pe_ok")
    def pre():
        a(f"s_mul_i32 s41, s30, 36864"); a(f"s_add_u32 s41, s41, {WS_LNH}")
        for q in range(4): a(f"buffer_load_dwordx2 v[{64+2*q}:{65+2*q}], v63, s[8:11], s41 offen offset:{16*q} sc1")
        return 4
    def epi():
        a("s_waitcnt vmcnt(0)")
        for q in range(4):
            for d in range(2):
                a(f"v_lshlrev_b32 v72, 16, v{64+2*q+d}")
                a(f"v_and_b32 v73, 0xffff0000, v{64+2*q+d}")
                a(f"v_add_f32 v{32+4*q+2*d}, v{32+4*q+2*d}, v72")
                a(f"v_add_f32 v{33+4*q+2*d}, v{33+4*q+2*d}, v73")
        pack_swap(a)
        a(f"s_mul_i32 s28, s30, 36864"); a(f"s_add_u32 s28, s28, {WS_XN3F}")
        a("buffer_store_dwordx4 v[48:51], v15, s[8:11], s28 offen sc1")
        a("buffer_store_dwordx4 v[52:55], v15, s[8:11], s28 offen offset:512 sc1")
        a("v_mov_b64 v[72:73], 0")
        for r in range(48, 56):
            a(f"v_lshlrev_b32 v32, 16, v{r}"); a(f"v_and_b32 v33, 0xffff0000, v{r}")
            a("v_add_f32 v72, v72, v32"); a("v_fmac_f32 v73, v32, v32")
            a("v_add_f32 v72, v72, v33"); a("v_fmac_f32 v73, v33, v33")
        a("s_cmp_ge_u32 s42, 18"); a(f"s_cbranch_scc0 {pfx}_stok"); a("v_mov_b64 v[72:73], 0"); a.label(f"{pfx}_stok")
        a("v_mov_b64 v[34:35], v[72:73]")
        a("v_permlane32_swap_b32 v72, v34"); a("v_permlane32_swap_b32 v73, v35")
        a("v_pk_add_f32 v[72:73], v[72:73], v[34:35]")
        a(f"ds_write_b64 v74, v[72:73] offset:{STL}")
        a("s_waitcnt lgkmcnt(0)"); a("s_barrier")
        a(f"v_lshlrev_b32 v32, 3, v1")
        for w in range(4): a(f"ds_read_b64 v[{34+2*w}:{35+2*w}], v32 offset:{STL + 256*w}")
        a("s_waitcnt lgkmcnt(0)")
        a("v_pk_add_f32 v[34:35], v[34:35], v[36:37]"); a("v_pk_add_f32 v[38:39], v[38:39], v[40:41]")
        a("v_pk_add_f32 v[34:35], v[34:35], v[38:39]")
        a(f"s_mul_i32 s28, s30, 1280"); a(f"s_add_u32 s28, s28, {WS_ST}")
        a("buffer_store_dwordx2 v[34:35], v77, s[8:11], s28 offen sc1")
    stage_ll(a, pfx, 'shift', setup, wait_in, pre, epi, "s31", s_g, 2, nseg, pre_wait)

def w3m(mi, i):
    k = mi*36 + i
    return ("a", 4*k) if k < 64 else ("v", 80 + 4*(k - 64))

def role_proj3(a, pfx, s_h, mats="KVQ", nseg=64, pre_wait=None):
    NM_ = len(mats)
    TO = f"{pfx}_timeout"
    a(f"""
    s_lshl_b32 s23, {s_h}, 8
    v_and_b32 v1, 63, v0
    v_lshrrev_b32 v2, 6, v0
    v_lshrrev_b32 v3, 4, v1
    v_and_b32 v4, 15, v1
    v_lshl_add_u32 v5, v2, 2, v3
    v_lshlrev_b32 v5, 13, v5
    v_lshlrev_b32 v6, 2, v3
    v_xor_b32 v6, v4, v6
    v_lshl_add_u32 v5, v6, 4, v5
    v_add_u32 v5, s23, v5
    v_lshrrev_b32 v6, 1, v3
    v_and_b32 v7, 1, v3
    v_lshrrev_b32 v8, 2, v4
    v_and_b32 v9, 3, v1
    v_lshl_add_u32 v10, v6, 3, v8
    v_lshlrev_b32 v10, 8, v10
    v_lshlrev_b32 v11, 2, v2
    v_lshl_add_u32 v11, v7, 1, v11
    v_lshrrev_b32 v12, 1, v9
    v_add_u32 v11, v11, v12
    v_lshlrev_b32 v12, 2, v8
    v_xor_b32 v11, v11, v12
    v_lshl_add_u32 v10, v11, 4, v10
    v_and_b32 v12, 1, v9
    v_lshl_add_u32 v10, v12, 3, v10
    v_add_u32 v10, {STG}, v10
    s_lshl_b32 s24, s22, 10
    s_mov_b32 s14, {SZ['wq']}
    s_mov_b32 s15, 0x20000
    """)
    chunks = [(m, c) for m in range(NM_) for c in range(9)]
    NCH = len(chunks)
    cur = [None]
    def dma_chunk(n):
        m, c = chunks[n]; b = n % 4
        if cur[0] != m:
            cur[0] = m
            a(f"s_mov_b32 s12, s{40+2*m}"); a(f"s_and_b32 s13, s{41+2*m}, 0xffff")
        for q in range(4):
            a(f"s_add_u32 m0, s24, {STG + b*16384 + q*4096}")
            a(f"s_mov_b32 s25, {(64*c + 16*q)*8192}")
            a(f"buffer_load_dwordx4 v5, s[12:15], s25 offen lds")
    for n in range(3): dma_chunk(n)
    for n in range(NCH):
        rem = min(2, NCH - 1 - n)
        a(f"s_waitcnt vmcnt({4*rem})")
        a("s_barrier")
        if n + 3 < NCH: dma_chunk(n + 3)
        m, c = chunks[n]; b = n % 4
        for kk in range(4):
            kind, r = w3m(m, 4*c + kk)
            for half in range(2):
                a(f"ds_read_b64_tr_b16 {kind}[{r+2*half}:{r+2*half+1}], v10 offset:{b*16384 + kk*4096 + half*1024}")
        a("s_waitcnt lgkmcnt(0)")
    a(f"""
    v_lshlrev_b32 v12, 4, v1                 ; lane*16
    v_mul_u32_u24 v13, 9216, v2
    v_add_u32 v13, v13, v12
    v_add_u32 v14, {XB1}, v12
    v_and_b32 v15, 31, v1
    v_lshrrev_b32 v15, 4, v15
    v_lshlrev_b32 v15, 10, v15
    v_lshrrev_b32 v6, 5, v1
    v_lshl_add_u32 v6, v6, 4, v4
    v_lshl_add_u32 v15, v6, 4, v15
    v_lshl_add_u32 v15, v2, 11, v15
    s_mul_i32 s26, s22, 9216
    s_lshl_b32 s27, {s_h}, 13                ; (seg*32 + h)*8192
    s_mov_b32 s29, {WS_XNF}
    s_mov_b32 s30, 0
    s_lshl_b32 s31, {s_h}, 7
    s_add_u32 s31, s31, {WS_FLG}
    s_mov_b32 s33, {f32(QSCALE)}
    """)
    if pre_wait: pre_wait()
    a(f"s_mov_b32 s39, {FLG(FL_LN1)}"); a("s_mov_b32 s91, 1")
    poll_line(a, pfx, "ln", "s39", 64, 128, "s91", TO, vt=70)
    def dma_x(buf):
        for j in range(3):
            a(f"s_add_u32 m0, s26, {buf + 4096*j}")
            a(f"s_add_u32 s32, s29, {4096*j}")
            for i in range(4 if j < 2 else 1):
                a(f"buffer_load_dwordx4 v13, s[8:11], s32 offen offset:{1024*i} sc1 lds")
        a("s_add_u32 s29, s29, 36864")
    ACC = [32, 48]; PK = 64
    def epi(mi, acc):
        out = []
        I = lambda t: out.append(lambda: a(t))
        mt = mats[mi]
        if mt != 'V':
            if mt == 'Q':
                for k in range(0, 16, 2): I(f"v_pk_mul_f32 v[{acc+k}:{acc+k+1}], v[{acc+k}:{acc+k+1}], s[34:35]")
            for q in range(4):
                I(f"v_cvt_pk_bf16_f32 v{PK+2*q}, v{acc+4*q}, v{acc+4*q+1}")
                I(f"v_cvt_pk_bf16_f32 v{PK+2*q+1}, v{acc+4*q+2}, v{acc+4*q+3}")
            I("s_nop 1")
            for q0 in (0, 2):
                I(f"v_permlane32_swap_b32 v{PK+2*q0}, v{PK+2+2*q0}")
                I(f"v_permlane32_swap_b32 v{PK+1+2*q0}, v{PK+3+2*q0}")
        else:
            for q in range(2):
                I(f"v_cvt_pk_bf16_f32 v{PK+4*q}, v{acc+4*q}, v{acc+4*q+1}")
                I(f"v_cvt_pk_bf16_f32 v{PK+4*q+1}, v{acc+4*q+2}, v{acc+4*q+3}")
                I(f"v_cvt_pk_bf16_f32 v{PK+4*q+2}, v{acc+8+4*q}, v{acc+8+4*q+1}")
                I(f"v_cvt_pk_bf16_f32 v{PK+4*q+3}, v{acc+8+4*q+2}, v{acc+8+4*q+3}")
        base = dict(K=WS_KB, V=WS_VB, Q=WS_QB)[mt]
        I(f"s_add_u32 s28, s27, {base}")
        I(f"buffer_store_dwordx4 v[{PK}:{PK+3}], v15, s[8:11], s28 offen sc1")
        I(f"buffer_store_dwordx4 v[{PK+4}:{PK+7}], v15, s[8:11], s28 offen offset:512 sc1")
        return out
    a("s_mov_b32 s34, s33"); a("s_mov_b32 s35, s33")
    def publish(val, tag):
        lab = f"{pfx}_np_{tag}"
        a(f"""
        s_cmp_eq_u32 s22, 0
        s_cbranch_scc0 {lab}
        v_mov_b32 v72, {val}
        v_mov_b32 v73, 0
        s_mov_b64 exec, 1
        """)
        for m in mats:
            a(f"s_add_u32 s37, s31, {dict(Q=0, K=4096, V=8192)[m]}")
            a("buffer_store_dword v72, v73, s[8:11], s37 offen sc1")
        a("s_mov_b64 exec, -1")
        a.label(lab)
    def seg_body(tag, vaddr, obuf, first):
        a("s_waitcnt vmcnt(0)" if first else f"s_waitcnt vmcnt({2*NM_})")
        a("s_barrier")
        if not first:
            a("s_sub_u32 s36, s30, 1"); publish("s36", tag)
            trace(a, f"{pfx}_{tag}", "s89", "s36", vt=72)
        a("s_add_u32 s36, s30, 1"); a(f"s_cmp_lt_u32 s36, {nseg}")
        a(f"s_cbranch_scc0 {pfx}_nd_{tag}")
        dma_x(obuf)
        a.label(f"{pfx}_nd_{tag}")
        pend = []
        NR = 4; n = 0
        order = [(mi, ks) for mi in range(NM_) for ks in range(36)]
        def rd(j):
            r = 16 + 4*(j % NR)
            a(f"ds_read_b128 v[{r}:{r+3}], v{vaddr} offset:{order[j][1]*1024}")
        for j in range(NR - 1): rd(j)
        for j, (mi, ks) in enumerate(order):
            if j + NR - 1 < len(order):
                rd(j + NR - 1); a(f"s_waitcnt lgkmcnt({NR-1})")
            else: a(f"s_waitcnt lgkmcnt({len(order)-1-j})")
            r = 16 + 4*(j % NR); acc = ACC[mi % 2]
            c = "0" if ks == 0 else f"v[{acc}:{acc+15}]"
            kind, w = w3m(mi, ks)
            W = f"{kind}[{w}:{w+3}]"; X = f"v[{r}:{r+3}]"
            if mats[mi] == 'V': a(f"v_mfma_f32_32x32x16_bf16 v[{acc}:{acc+15}], {X}, {W}, {c}")
            else:       a(f"v_mfma_f32_32x32x16_bf16 v[{acc}:{acc+15}], {W}, {X}, {c}")
            if ks == 2 and mi > 0: pend = epi(mi - 1, ACC[(mi - 1) % 2])
            for _ in range(2):
                if pend: pend.pop(0)()
        for f in epi(NM_ - 1, ACC[(NM_ - 1) % 2]): f()
        a("s_add_u32 s27, s27, %d" % (32*8192))
        a("s_add_u32 s30, s30, 1")
    dma_x(XB0)
    seg_body("p", 12, XB1, True)
    a.label(f"{pfx}_loop")
    seg_body("a", 14, XB0, False)
    a(f"s_cmp_ge_u32 s30, {nseg}"); a(f"s_cbranch_scc1 {pfx}_done")
    seg_body("b", 12, XB1, False)
    a(f"s_cmp_lt_u32 s30, {nseg}"); a(f"s_cbranch_scc1 {pfx}_loop")
    a.label(f"{pfx}_done")
    a("s_waitcnt vmcnt(0)"); a("s_barrier")
    a(f"s_mov_b32 s36, {nseg}"); publish("s36", "end")
    a.label(TO)
```

```python
from common import *
from collections import deque

MEMF = 0; QBUF = 9216; QKS = 40; QKB = 128*QKS; KBUF = QBUF + QKB; TBUF = KBUF + QKB; OBUF = TBUF; WRES = 24576
assert TBUF + 4608 <= WRES
NRES = 17
NHOLD0 = 11
STG = WRES + NHOLD0*8192
RB = [0, STG, STG + 16384, STG + 32768]
POLL_LIMIT = 1 << 15
PS = 9216
SELB = TBUF + 4608
assert SELB + 256 <= WRES

class Cnt:
    def __init__(self, a, name, cap):
        self.a = a; self.name = name; self.cap = cap; self.n = 0; self.done = 0
    def reset(self): self.n = 0; self.done = 0
    def issue(self, text):
        self.a(text); self.n += 1; return self.n
    def wait(self, tok):
        if tok <= self.done: return
        k = min(self.n - tok, self.cap)
        self.a(f"s_waitcnt {self.name}({k})")
        self.done = self.n - k
    def drain(self):
        if self.done == self.n: return
        self.a(f"s_waitcnt {self.name}(0)"); self.done = self.n

LDS_RES = [('Q',1,1),('Q',2,1),('Q',3,1),('Q',4,1),('Q',5,1),('Q',6,1),('Q',7,1),('Q',8,1),
           ('V',1,1),('V',3,0),('V',4,1),('V',6,0),('V',7,1),('V',8,1),
           ('O',2,0),('O',4,1),('O',7,0)]
assert len(LDS_RES) == NRES
VW0 = 72
def placement():
    pl = {}
    for i, f in enumerate(LDS_RES): pl[f] = ('l', i)
    regs = [('a', 8*i) for i in range(32)] + [('v', VW0 + 8*i) for i in range(23)]
    k = 0
    for mat in 'QKV':
        for ks in range(9):
            for t in range(2):
                f = (mat, ks, t)
                if f not in pl: pl[f] = ('r',) + regs[k]; k += 1
    for j in range(9):
        for kp in range(2):
            f = ('O', j, kp)
            if f not in pl: pl[f] = ('r',) + regs[k]; k += 1
    assert k == 55
    return pl
PL = placement()
def rng(kind, lo, n): return f"{kind}[{lo}:{lo+n-1}]"

PRE_POL = ['']
def wr_res(a, slot, lo):
    addr = WRES + slot*8192
    hi = addr // 65536; off = addr % 65536
    if hi == 0: base = "v3"
    else:
        a(f"v_add_u32 v13, {hi*65536}, v3"); base = "v13"
    a(f"ds_write_b128 {base}, v[{lo}:{lo+3}] offset:{off}")
    a(f"ds_write_b128 {base}, v[{lo+4}:{lo+7}] offset:{off+1024}")

def rec_preload(a, pfx, s_h):
    a(f"""
    v_and_b32 v1, 63, v0
    v_lshrrev_b32 v2, 6, v0
    v_lshrrev_b32 v3, 4, v1                  ; g
    v_and_b32 v4, 15, v1                     ; n
    v_lshl_add_u32 v5, v2, 2, v3
    v_and_b32 v6, 12, v5
    v_and_b32 v7, 1, v5
    v_lshl_or_b32 v6, v7, 1, v6
    v_xor_b32 v6, v4, v6
    v_lshlrev_b32 v5, 13, v5
    v_lshl_add_u32 v5, v6, 4, v5
    s_lshl_b32 s23, {s_h}, 8
    v_add_u32 v5, s23, v5
    v_lshrrev_b32 v6, 3, v1
    v_lshl_add_u32 v6, v2, 3, v6
    v_lshrrev_b32 v7, 2, v6
    v_and_b32 v7, 3, v7
    v_lshlrev_b32 v7, 1, v7
    v_and_b32 v8, 7, v1
    v_xor_b32 v7, v8, v7
    v_mul_u32_u24 v6, 1152, v6
    v_lshl_add_u32 v6, v7, 4, v6
    s_mul_i32 s23, {s_h}, 147456
    v_add_u32 v6, s23, v6
    v_lshrrev_b32 v8, 2, v4                  ; rho
    v_and_b32 v9, 3, v1                      ; c
    v_and_b32 v11, 1, v3                     ; g&1
    v_lshrrev_b32 v10, 1, v3
    v_lshlrev_b32 v10, 4, v10
    v_lshl_add_u32 v10, v11, 2, v10
    v_and_b32 v12, 1, v8
    v_add_u32 v10, v10, v12
    v_lshrrev_b32 v12, 1, v8
    v_lshl_add_u32 v10, v12, 3, v10          ; v10 = E0
    v_and_b32 v12, 12, v10
    v_and_b32 v13, 1, v10
    v_lshl_or_b32 v12, v13, 1, v12
    v_lshrrev_b32 v13, 1, v9
    v_lshl_add_u32 v13, v2, 2, v13
    v_xor_b32 v12, v12, v13
    v_lshlrev_b32 v7, 8, v10
    v_lshl_add_u32 v7, v12, 4, v7
    v_and_b32 v13, 1, v9
    v_lshl_add_u32 v7, v13, 3, v7
    v_mov_b32 v11, v7
    v_add_u32 v7, {STG}, v7
    v_xor_b32 v14, 32, v7                    ; v14 = tau=1
    ; Wo: f = 2*((E0>>2)&3); U = 2w + (c>>1)
    v_lshrrev_b32 v12, 2, v10
    v_and_b32 v12, 3, v12
    v_lshlrev_b32 v12, 1, v12
    v_lshrrev_b32 v13, 1, v9
    v_lshl_add_u32 v13, v2, 1, v13
    v_xor_b32 v12, v12, v13
    v_lshlrev_b32 v15, 7, v10
    v_lshl_add_u32 v15, v12, 4, v15
    v_and_b32 v13, 1, v9
    v_lshl_add_u32 v15, v13, 3, v15
    v_mov_b32 v10, v15
    v_add_u32 v15, {STG}, v15
    v_xor_b32 v12, 32, v11
    v_lshlrev_b32 v3, 4, v1
    v_lshl_add_u32 v3, v2, 11, v3            ; v3 = w*2048 + lane*16
    s_lshl_b32 s24, s22, 10
    """)
    chunks = [(m, i) for m in 'QKV' for i in range(9)] + [('O', j) for j in range(9)]
    cur = [None]
    def setw(mat):
        if cur[0] == mat: return
        cur[0] = mat
        p = 40 + 2*'QKVO'.index(mat)
        a(f"s_mov_b32 s12, s{p}"); a(f"s_and_b32 s13, s{p+1}, 0xffff")
    def dma(c):
        mat, i = chunks[c]; b = c % 4
        setw(mat)
        for m in range(4):
            a(f"s_add_u32 m0, s24, {RB[b] + m*4096}")
            if mat != 'O':
                a(f"s_mov_b32 s25, {(64*i + 16*m)*8192}")
                a(f"buffer_load_dwordx4 v5, s[12:15], s25 offen{PRE_POL[0]} lds")
            else:
                a(f"s_mov_b32 s25, {i*128 + m*32*1152}")
                a(f"buffer_load_dwordx4 v6, s[12:15], s25 offen{PRE_POL[0]} lds")
    a(f"s_mov_b32 s14, {SZ['wq']}"); a("s_mov_b32 s15, 0x20000")
    for c in range(3): dma(c)
    TMP = 64
    held = list(range(NHOLD0, NRES))
    hold = {s: 16 + 8*i for i, s in enumerate(held)}
    for c in range(36):
        rem = min(2, 35 - c)
        a(f"s_waitcnt vmcnt({4*rem})")
        a("s_barrier")
        if c + 3 < 36: dma(c + 3)
        mat, i = chunks[c]; b = c % 4
        for t in range(2):
            f = (mat, i, t); p = PL[f]
            direct = None
            if p[0] == 'r': kind, lo = p[1], p[2]
            elif p[1] in hold: kind, lo = 'v', hold[p[1]]
            else: kind, lo, direct = 'v', TMP, p[1]
            for rp in range(4):
                bo = 0 if b == 0 else (b - 1)*16384
                if mat != 'O':
                    base = (('v11', 'v12') if b == 0 else ('v7', 'v14'))[t]
                    off = bo + (rp >> 1)*8192 + (rp & 1)*512
                else:
                    base = 'v10' if b == 0 else 'v15'
                    off = bo + t*8192 + (rp >> 1)*4096 + (rp & 1)*256
                a(f"ds_read_b64_tr_b16 {kind}[{lo+2*rp}:{lo+2*rp+1}], {base} offset:{off}")
            if direct is not None:
                a("s_waitcnt lgkmcnt(0)")
                wr_res(a, direct, lo)
        a("s_waitcnt lgkmcnt(0)")
    a("s_barrier")
    for s in held:
        wr_res(a, s, hold[s])
    a("s_waitcnt lgkmcnt(0)")

vL16, vT16, vLW, vIDX, vQW, vTR, vOW, vTW, vTRD, vH1L, vH2S, vPF, vOWN = range(1, 14)
AR = [16, 20, 24]; LB = 28
ACCQ, ACCK, ACCV, KV = 36, 44, 52, 60
SP = 68
sW = 22; sS = 50; sH2R = 51; sH2W = 52; sH1 = 54; sH1o = 55; sKB = 56; sKM = 57; sKVOK = 58
sPOLL = 61; sT0 = 62; sT1 = 63; sFLG = 64; sH1base = 65; sERR = 66; sT2 = 67; sDBG = 68; sT3 = 69
sW1K = 70; sQS = 72
sONE = 98; sHALF = 100; sX0 = 74; sX1 = 75; sH2P = 76; sH1P = 77; sR0 = 78; sR1 = 30; sR2 = 31; sR3 = 32; sH2S = 35; sP0 = 33; sH2Z = 34; sKMo = 36; sFirst = 37; sKVN = 38; sKVP = 39; sKVA = 28; sKVB = 29; sSEG = 27
OPT = {}

def rec_setup(a, pfx, s_h):
    a(f"""
    v_and_b32 v14, 63, v0                    ; lane
    v_lshrrev_b32 v15, 6, v0                 ; wave
    v_lshrrev_b32 v16, 4, v14                ; g
    v_and_b32 v17, 15, v14                   ; n
    v_lshrrev_b32 v18, 2, v17                ; rho = n>>2
    v_and_b32 v19, 3, v14                    ; c
    v_bfe_u32 v20, v17, 1, 1                 ; (n>>1)&1
    v_and_b32 v21, 1, v17                    ; n&1
    v_lshlrev_b32 v{vL16}, 4, v14
    v_lshlrev_b32 v{vT16}, 4, v0
    v_lshl_add_u32 v{vLW}, v15, 11, v{vL16}
    v_mov_b32 v{vIDX}, 0x4444
    v_mov_b32 v24, 0xeeee
    v_cmp_ne_u32 vcc, 0, v20
    v_cndmask_b32 v{vIDX}, v{vIDX}, v24, vcc
    v_lshl_add_u32 v23, v15, 5, v17
    v_mul_u32_u24 v23, {QKS}, v23
    v_lshl_add_u32 v23, v16, 3, v23
    v_add_u32 v{vQW}, {QBUF}, v23
    v_lshl_add_u32 v23, v16, 3, v18
    v_mul_u32_u24 v23, {QKS}, v23
    v_lshl_add_u32 v{vTR}, v19, 3, v23
    v_mul_u32_u24 v23, {32*QKS}, v15
    v_add_u32 v{vOWN}, v23, v{vTR}
    v_and_b32 v22, 7, v17
    v_lshlrev_b32 v23, 9, v15
    v_lshl_add_u32 v23, v22, 5, v23
    v_lshl_add_u32 v23, v16, 3, v23
    v_lshrrev_b32 v24, 3, v17
    v_lshl_add_u32 v23, v24, 2, v23
    v_add_u32 v{vOW}, {OBUF}, v23
    ; q8 = 2*(n>>2) + (n&1);  t = (8g + q8)*16
    v_lshl_add_u32 v22, v18, 1, v21          ; q8 = upsilon
    v_lshl_add_u32 v23, v16, 3, v22
    v_lshlrev_b32 v23, 4, v23
    v_mul_u32_u24 v24, 1152, v15
    v_add_u32 v24, v24, v23
    v_add_u32 v{vTW}, {TBUF}, v24
    v_mul_u32_u24 v24, {1024+128}, v20
    v_add_u32 v24, v24, v23
    v_add_u32 v{vTRD}, {TBUF}, v24
    s_lshr_b32 s{sT0}, {s_h}, 3              ; wj
    s_lshr_b32 s{sT1}, {s_h}, 1
    s_and_b32 s{sT1}, s{sT1}, 3              ; gt
    s_and_b32 s{sT2}, {s_h}, 1               ; o
    s_lshl_b32 s{sT3}, s{sT0}, 6
    s_lshl_b32 s{sPOLL}, s{sT1}, 4
    s_add_u32 s{sT3}, s{sT3}, s{sPOLL}
    s_lshl_b32 s{sPOLL}, s{sT2}, 3
    s_add_u32 s{sT3}, s{sT3}, s{sPOLL}       ; 64wj+16gt+8o
    s_mul_i32 s{sSEG}, s{sT3}, 12
    s_mul_i32 s{sPOLL}, s{sW}, 3072
    s_add_u32 s{sSEG}, s{sSEG}, s{sPOLL}
    v_add_u32 v23, s{sT3}, v22
    v_mul_u32_u24 v23, 12, v23
    v_lshl_add_u32 v24, v16, 1, v20
    v_mul_u32_u24 v24, {PS}, v24
    v_add_u32 v23, v23, v24
    s_mul_i32 s{sT3}, s{sW}, 3072
    s_cmp_eq_u32 s{sW}, 3
    s_cselect_b32 s{sT3}, 0x7fff0000, s{sT3}
    v_add_u32 v{vH1L}, s{sT3}, v23
    s_lshl_b32 s{sT3}, s{sT0}, 4
    s_lshl_b32 s{sPOLL}, s{sT1}, 2
    s_add_u32 s{sT3}, s{sT3}, s{sPOLL}
    s_lshl_b32 s{sPOLL}, s{sT2}, 1
    s_add_u32 s{sT3}, s{sT3}, s{sPOLL}
    v_add_u32 v23, s{sT3}, v21
    v_lshlrev_b32 v23, 4, v23
    v_lshl_add_u32 v23, v16, 2, v23
    v_lshrrev_b32 v24, 1, v17
    v_lshl_add_u32 v23, v24, 10, v23
    s_mul_i32 s{sT3}, s{sW}, 3072
    s_cmp_eq_u32 s{sW}, 3
    s_cselect_b32 s{sT3}, 0x7fff0000, s{sT3}
    v_add_u32 v{vH2S}, s{sT3}, v23
    v_mov_b32 v24, 0x7fff0000
    v_cmp_gt_u32 vcc, 6, v17
    v_cndmask_b32 v{vH2S}, v24, v{vH2S}, vcc
    v_lshlrev_b32 v23, 7, v17
    v_lshl_add_u32 v23, v15, 11, v23
    v_and_b32 v24, 1, v16
    v_mul_u32_u24 v24, {(WS_VB-WS_KB)//16}, v24
    v_lshl_add_u32 v{vPF}, v24, 4, v23
    s_lshl_b32 s{sT0}, {s_h}, 13
    s_add_u32 s{sKB}, s{sT0}, {WS_KB}
    s_lshl_b32 s{sT0}, {s_h}, 12
    s_add_u32 s{sKM}, s{sT0}, {WS_KM}
    s_mul_i32 s{sT0}, {s_h}, {PS}
    s_add_u32 s{sH1base}, s{sT0}, {WS_H1}
    s_lshl_b32 s{sT0}, {s_h}, 7
    s_add_u32 s{sFLG}, s{sT0}, {WS_FLG}
    s_mov_b32 s{sS}, 0
    s_mov_b32 s{sKVOK}, 0
    s_mov_b32 s{sERR}, 0
    s_mov_b32 s{sH2R}, {WS_H2}
    s_mov_b32 s{sH2W}, {WS_H2 + 9216}
    s_mov_b32 s{sH1}, 0
    s_mov_b32 s{sH2P}, {WS_H2 + 3*9216}
    s_mov_b32 s{sH1P}, {2*32*PS}
    s_lshl_b32 s{sW1K}, s{sW}, 10
    s_mov_b32 s{sQS}, {f32(QSCALE)}
    s_mov_b32 s{sQS+1}, {f32(QSCALE)}
    s_mov_b32 s{sONE}, 0x3f803f80
    s_mov_b32 s{sONE+1}, 0x3f803f80
    s_mov_b32 s{sHALF}, 0x3f003f00
    s_mov_b32 s{sHALF+1}, 0x3f003f00
    """)

MASK6 = 0x003f003f
def rec_reset_rings(a, pfx):
    a(f"s_cmp_eq_u32 s{sW}, 3")
    a(f"s_cbranch_scc1 {pfx}_noreset")
    for r in range(16, 20): a(f"v_mov_b32 v{r}, -1")
    for slot in range(3):
        for jj in range(4):
            a(f"s_mov_b32 s{sT0}, {WS_H1 + slot*32*PS + jj*8*PS}")
            a(f"buffer_store_dwordx3 v[16:18], v{vH1L}, s[8:11], s{sT0} offen")
    for slot in range(4):
        a(f"s_mov_b32 s{sT0}, {WS_H2 + slot*9216}")
        a(f"buffer_store_dword v16, v{vH2S}, s[8:11], s{sT0} offen")
    a.label(f"{pfx}_noreset")
    a("s_waitcnt vmcnt(0)")

def rec_mem0(a, pfx):
    a(f"""
    v_and_b32 v28, 63, v0
    v_and_b32 v29, 15, v28                   ; i
    v_lshrrev_b32 v30, 2, v29
    v_and_b32 v31, 1, v29
    v_lshl_add_u32 v30, v30, 1, v31          ; token
    v_mul_u32_u24 v30, 1152, v30
    v_lshrrev_b32 v31, 4, v28                ; gA
    v_lshl_add_u32 v30, v31, 5, v30
    v_bfe_u32 v31, v29, 1, 1                 ; hh
    v_lshl_add_u32 v30, v31, 4, v30
    s_cmp_eq_u32 s{sW}, 3
    s_cselect_b32 s{sT0}, 0, s{sW}
    s_lshl_b32 s{sT0}, s{sT0}, 7
    v_add_u32 v30, s{sT0}, v30
    buffer_load_dwordx4 v[16:19], v30, s[4:7], 0 offen
    buffer_load_dwordx4 v[20:23], v30, s[4:7], 0 offen offset:384
    buffer_load_dwordx4 v[24:27], v30, s[4:7], 0 offen offset:768
    v_and_b32 v32, 1, v29
    v_lshlrev_b32 v32, 4, v32
    v_mov_b32 v33, 0x3f80
    v_lshlrev_b32 v32, v32, v33
    v_bfe_u32 v33, v29, 1, 2
    """)
    for r in range(4):
        a(f"v_cmp_eq_u32 vcc, {r}, v33")
        a(f"v_cndmask_b32 v{36+r}, 0, v32, vcc")
    a(f"v_lshlrev_b32 v33, 4, v29")
    a(f"ds_write_b128 v33, v[36:39] offset:{SELB}")
    a("s_waitcnt vmcnt(0)")
    a(f"s_cmp_eq_u32 s{sW}, 3"); a(f"s_cbranch_scc1 {pfx}_mem0_skip")
    a(f"""
    ds_write_b128 v{vT16}, v[16:19] offset:{MEMF}
    ds_write_b128 v{vT16}, v[20:23] offset:{MEMF + 3072}
    ds_write_b128 v{vT16}, v[24:27] offset:{MEMF + 6144}
    """)
    a.label(f"{pfx}_mem0_skip")

def bfrag(f):
    p = PL[f]; assert p[0] == 'r'
    return rng(p[1], p[2], 8)

class Sched:
    def __init__(self, a, L):
        self.a = a; self.L = L; self.fill = deque(); self.hi = None; self.acount = 0
    def pop(self, k):
        for _ in range(k):
            if not self.fill: return
            self.fill.popleft()()
    def flush(self):
        while self.fill: self.fill.popleft()()
    def res_read(self, slot, LB=LB):
        addr = WRES + slot*8192
        hi = addr // 65536; off = addr % 65536
        if hi == 0: base = f"v{vLW}"
        else:
            if self.hi != hi:
                self.a(f"v_add_u32 v14, {hi*65536}, v{vLW}"); self.hi = hi
            base = "v14"
        self.L.issue(f"ds_read_b128 v[{LB}:{LB+3}], {base} offset:{off}")
        return self.L.issue(f"ds_read_b128 v[{LB+4}:{LB+7}], {base} offset:{off+1024}")

class Stream:
    def __init__(self, S, groups, ops, lbs):
        self.S = S; self.a = S.a; self.L = S.L
        self.alist = groups; self.ops = ops; self.lbs = lbs
        self.last = {}
        for i, (g, m, acc, t) in enumerate(ops): self.last[g] = i
        self.lds = [(m, groups[g], t, i) for i, (g, m, acc, t) in enumerate(ops) if PL[(m, groups[g], t)][0] == 'l']
        self.atok = {}; self.btok = {}; self.bbuf = {}; self.nb = 0; self.na = 0; self.i = 0; self.hold = False
        self.busy = {}
    def rdA(self):
        if self.na >= len(self.alist): return
        k = self.na; self.na += 1
        r = AR[k % 3]
        self.atok[k] = self.L.issue(f"ds_read_b128 v[{r}:{r+3}], v{vL16} offset:{MEMF + self.alist[k]*1024}")
    def rdB(self):
        while self.nb < len(self.lds):
            m, ks, t, i = self.lds[self.nb]
            buf = self.lbs(self.nb)
            if buf is None or buf in self.busy: return
            self.busy[buf] = i
            self.btok[i] = self.S.res_read(PL[(m, ks, t)][1], buf); self.bbuf[i] = buf
            self.nb += 1
    def start(self, preloaded=0):
        for k in range(preloaded): self.atok[k] = 0
        self.na = preloaded; self.hold = preloaded > 0
        if not preloaded:
            for _ in range(3): self.rdA()
        self.rdB()
    def step(self):
        i = self.i; g, mat, acc, t = self.ops[i]; self.i += 1
        a = self.a; ks = self.alist[g]
        self.L.wait(self.atok[g])
        r = AR[g % 3]
        D = f"v[{acc+4*t}:{acc+4*t+3}]"; A = f"v[{r}:{r+3}]"
        if PL[(mat, ks, t)][0] == 'l':
            if i not in self.btok: self.rdB()
            self.L.wait(self.btok[i]); buf = self.bbuf[i]
            a(f"v_smfmac_f32_16x16x64_bf16 {D}, {A}, v[{buf}:{buf+7}], v{vIDX}")
            del self.busy[buf]
            self.rdB()
        else:
            a(f"v_smfmac_f32_16x16x64_bf16 {D}, {A}, {bfrag((mat, ks, t))}, v{vIDX}")
        if self.last[g] == i and not self.hold: self.rdA()

def rec_steps(a, pfx, s_h, nsteps=64, debug=False, stamp=False, opts=()):
    L = Cnt(a, "lgkmcnt", 15)
    S = Sched(a, L)
    O = dict(OPT)
    for o in opts:
        if '=' in o and not o.startswith(('st=', 'map=', 'tseg=', 'sleep=')):
            k, v = o.split('='); O[k] = int(v)
    def AT(i, extra=None, tag='abs', step=30, sfx=''):
        if tag not in opts: return
        lab = f"{pfx}_at{i}_{tag}{sfx}"
        a("s_nop 7")
        a(f"s_cmp_eq_u32 s{sS}, {step}"); a(f"s_cbranch_scc0 {lab}")
        a("s_waitcnt lgkmcnt(0)"); L.done = L.n
        a("s_memtime s[80:81]"); a("s_waitcnt lgkmcnt(0)"); a(f"s_mov_b32 s{84+i}, s80")
        if extra is not None: a(f"s_mov_b32 s{84+extra[0]}, s{extra[1]}")
        a.label(lab)
    def ST(i):
        if not stamp: return
        if stamp != True and i not in stamp: return
        a("s_waitcnt lgkmcnt(0)"); L.done = L.n
        a("s_memtime s[80:81]")
        a("s_waitcnt lgkmcnt(0)")
        a("s_sub_u32 s81, s80, s82")
        a(f"s_add_u32 s{84+i}, s{84+i}, s81")
        a("s_mov_b32 s82, s80")
    def delay(n):
        while n > 0:
            k = min(n, 16); a(f"s_nop {k-1}"); n -= k
    if stamp:
        for i in range(12): a(f"s_mov_b32 s{84+i}, 0")
        a("s_memtime s[80:81]"); a("s_waitcnt lgkmcnt(0)"); a("s_mov_b32 s82, s80"); a("s_mov_b32 s97, s80")
    LOOP = f"{pfx}_step"
    SEL = 24
    def kv_check(tag):
        a(f"s_add_u32 s{sKVN}, s{sS}, 2")
        a(f"s_min_u32 s{sKVN}, s{sKVN}, 64")
        a(f"s_cmp_ge_u32 s{sKVOK}, s{sKVN}")
        a(f"s_cbranch_scc1 {pfx}_kvok{tag}")
        a(f"s_mov_b32 s{sKVP}, 0")
        a(f"v_and_b32 v15, 16, v{vL16}")
        a(f"v_lshlrev_b32 v15, 8, v15")
        a(f"s_add_u32 s{sKVA}, s{sFLG}, 4096")
        a.label(f"{pfx}_kvpoll{tag}")
        a(f"""
        buffer_load_dword v14, v15, s[8:11], s{sKVA} offen sc1
        s_add_u32 s{sKVP}, s{sKVP}, 1
        s_cmp_gt_u32 s{sKVP}, {POLL_LIMIT}
        s_cbranch_scc1 {pfx}_timeout
        s_waitcnt vmcnt(0)
        v_readlane_b32 s{sKVB}, v14, 0
        v_readlane_b32 s{sKVOK}, v14, 1
        s_min_u32 s{sKVOK}, s{sKVOK}, s{sKVB}
        s_cmp_ge_u32 s{sKVOK}, s{sKVN}
        s_cbranch_scc0 {pfx}_kvpoll{tag}
        """)
        a.label(f"{pfx}_kvok{tag}")
    def advance():
        a(f"""
        s_add_u32 s{sR0}, s{sH1P}, {WS_H1}
        s_add_u32 s{sR1}, s{sR0}, {8*PS}
        s_add_u32 s{sR2}, s{sR0}, {16*PS}
        s_add_u32 s{sR3}, s{sR0}, {24*PS}
        s_mov_b32 s{sH2Z}, s{sH2P}
        s_mov_b32 s{sKMo}, s{sKM}
        s_add_u32 s{sS}, s{sS}, 1
        s_add_u32 s{sKB}, s{sKB}, {32*8192}
        s_add_u32 s{sKM}, s{sKM}, {32*4096}
        s_mov_b32 s{sH1P}, s{sH1}
        s_add_u32 s{sH1}, s{sH1}, {32*PS}
        s_cmp_eq_u32 s{sH1}, {3*32*PS}
        s_cselect_b32 s{sH1}, 0, s{sH1}
        s_mov_b32 s{sH2S}, s{sH2W}
        s_mov_b32 s{sH2P}, s{sH2R}
        s_mov_b32 s{sH2R}, s{sH2W}
        s_add_u32 s{sH2W}, s{sH2W}, 9216
        s_cmp_eq_u32 s{sH2W}, {WS_H2 + 4*9216}
        s_cselect_b32 s{sH2W}, {WS_H2}, s{sH2W}
        s_add_u32 s{sP0}, s{sH2R}, s{sW1K}
        """)
    def k_loads():
        a(f"buffer_load_dwordx4 v[{KV}:{KV+3}], v{vLW}, s[8:11], s{sKB} offen")
        a(f"buffer_load_dwordx4 v[{KV+4}:{KV+7}], v{vLW}, s[8:11], s{sKB} offen offset:1024")
    for r in range(ACCQ, ACCQ + 16, 2): a(f"v_mov_b64 v[{r}:{r+1}], 0")
    a(f"s_cmp_eq_u32 s{sW}, 3"); a(f"s_cselect_b32 s{sW1K}, 0, s{sW1K}")
    kv_check("i")
    a(f"buffer_load_dword v0, v{vPF}, s[8:11], s{sKB} offen")
    k_loads()
    a("s_waitcnt vmcnt(0)")
    a(f"s_mov_b32 s{sFirst}, 1")
    a.label(LOOP)
    for w in range(1, 4):
        a(f"s_cmp_eq_u32 s{sW}, {w}"); a(f"s_cbranch_scc1 {pfx}_var{w}")
    I = lambda t: (lambda: a(t))
    VM = ACCV
    cv = lambda d, s: I(f"v_cvt_pk_bf16_f32 v{d}, v{s}, v{s+1}")
    pk = lambda d, s: I(f"v_pk_add_f32 v[{d}:{d+1}], v[{d}:{d+1}], v[{s}:{s+1}]")
    pm = lambda d: I(f"v_pk_mul_f32 v[{d}:{d+1}], v[{d}:{d+1}], s[{sQS}:{sQS+1}]")
    for w in range(4):
        if w: a.label(f"{pfx}_var{w}")
        L.reset(); S.hi = None
        tk = {}
        def D(text, key=None):
            def f():
                t = L.issue(text)
                if key: tk[key] = t
            return f
        def W(key): return lambda: L.wait(tk[key])
        wp = w if w < 3 else 0
        first = [wp, wp + 3, wp + 6]
        order = first + [k for k in range(9) if k not in first]
        groups = order + list(range(9))
        ops = []
        for g in range(7): ops += [(g, 'Q', ACCQ, 0), (g, 'Q', ACCQ, 1), (g, 'K', ACCK, 0), (g, 'K', ACCK, 1)]
        for g in (7, 8): ops += [(g, 'Q', ACCQ, 0), (g, 'Q', ACCQ, 1)]
        for g in (7, 8): ops += [(g, 'K', ACCK, 0), (g, 'K', ACCK, 1)]
        for g in range(9, 18): ops += [(g, 'V', ACCV, 0), (g, 'V', ACCV, 1)]
        nq = sum(1 for (g, m, acc, t) in ops if m != 'V' and PL[(m, groups[g], t)][0] == 'l')
        def lbs(n):
            if n >= nq: return LB
            return LB if (nq - 1 - n) % 2 == 0 else ACCV
        X = Stream(S, groups, ops, lbs)
        X.start(preloaded=3)
        a(f"s_cmp_eq_u32 s{sFirst}, 1"); a(f"s_cbranch_scc1 {pfx}_p0done{w}")
        a("s_barrier")
        delay(O.get('d2', 8))
        a(f"s_mov_b32 s{sPOLL}, 0")
        a(f"s_add_u32 s{sT1}, s{sP0}, 3072")
        a(f"s_add_u32 s{sT3}, s{sP0}, 6144")
        a.label(f"{pfx}_p0poll{w}")
        a(f"""
        buffer_load_dwordx4 v[16:19], v{vL16}, s[8:11], s{sP0} offen sc1
        buffer_load_dwordx4 v[20:23], v{vL16}, s[8:11], s{sT1} offen sc1
        buffer_load_dwordx4 v[24:27], v{vL16}, s[8:11], s{sT3} offen sc1
        s_add_u32 s{sPOLL}, s{sPOLL}, 1
        s_cmp_gt_u32 s{sPOLL}, {POLL_LIMIT}
        s_cbranch_scc1 {pfx}_timeout
        s_waitcnt vmcnt(2)
        v_max3_u32 v15, v16, v17, v18
        s_waitcnt vmcnt(1)
        v_max3_u32 v15, v15, v19, v20
        v_max3_u32 v15, v15, v21, v22
        s_waitcnt vmcnt(0)
        v_max3_u32 v15, v15, v23, v24
        v_max3_u32 v15, v15, v25, v26
        v_max_u32 v15, v15, v27
        v_cmp_eq_u32 vcc, -1, v15
        s_cbranch_vccnz {pfx}_p0poll{w}
        """)
        if 'cnt' in opts: a(f"s_add_u32 s85, s85, s{sPOLL}")
        a.label(f"{pfx}_p0done{w}")
        a(f"s_mov_b32 s{sFirst}, 0")
        AT(4, (8, sPOLL), tag='hop', step=31, sfx=str(w)); AT(0, tag='qv', sfx=str(w))
        if w < 3:
            L.issue(f"ds_write_b128 v{vT16}, v[16:19] offset:{MEMF}")
            L.issue(f"ds_write_b128 v{vT16}, v[20:23] offset:{MEMF + 3072}")
            tk['mw'] = L.issue(f"ds_write_b128 v{vT16}, v[24:27] offset:{MEMF + 6144}")
        if w == 0: a("; MARK B0")
        def b0():
            if 'mw' in tk: L.wait(tk['mw'])
            a("s_barrier")
            AT(1, tag='qv', sfx=str(w))
            X.hold = False
            X.rdA(); X.rdA()
        def run(n, plan):
            for i in range(n):
                X.step()
                for f in plan.get(i, []): f()
        def f_pf():
            a(f"s_add_u32 s{sT0}, s{sKB}, {32*8192}")
            a(f"buffer_load_dword v0, v{vPF}, s[8:11], s{sT0} offen")
        plan = {7: [b0], 12 + 4*w: [f_pf]}
        if w == 3:
            def f_flag():
                a(f"v_mov_b32 v{SP}, s{sS}"); a(f"v_mov_b32 v{SP+1}, 0")
                a(f"s_add_u32 s{sT0}, s{sFLG}, {3*4096}")
                a(f"buffer_store_dword v{SP}, v{SP+1}, s[8:11], s{sT0} offen sc1")
            plan[9] = [f_flag]
        zv = [I(f"v_mov_b64 v[{r}:{r+1}], 0") for r in range(ACCV, ACCV + 8, 2)]
        for k in range(4): plan.setdefault(30 + k if k < 2 else 30 + k, []).append(zv[k])
        run(32, {k: v for k, v in plan.items() if k < 32})
        run(4, {0: plan.get(32, []), 1: plan.get(33, []) + [pk(ACCQ, ACCQ+2)], 2: [pk(ACCQ+4, ACCQ+6), pm(ACCQ)], 3: [pm(ACCQ+4), cv(ACCQ+2, ACCQ)]})
        if w == 0: a("; MARK QKend")
        AT(2, tag='qv', sfx=str(w))
        def t_mm0():
            L.wait(tk['qr'])
            a(f"v_mfma_f32_16x16x32_bf16 v[{ACCQ}:{ACCQ+3}], v[{KV}:{KV+3}], v[{SP}:{SP+3}], 0")
        def v_ld0():
            a(f"s_add_u32 s{sT0}, s{sKB}, {WS_VB - WS_KB}")
            a(f"buffer_load_dwordx4 v[{KV}:{KV+3}], v{vLW}, s[8:11], s{sT0} offen")
        KO_, MD = ACCK, ACCK + 4
        def m_mm():
            L.wait(tk['kr'])
            a(f"v_mfma_f32_16x16x32_bf16 v[{MD}:{MD+3}], v[{KO_}:{KO_+3}], v[{SP}:{SP+3}], 0")
        def km_st():
            a(f"v_subrev_u32 v{MD+2}, {TBUF + 640*w}, v{vTW}")
            a("s_mov_b32 exec_lo, 0x33333333"); a("s_mov_b32 exec_hi, 0x33333333")
            if 'nopub' not in opts: a(f"buffer_store_dwordx4 v[{KO_}:{KO_+3}], v{MD+2}, s[8:11], s{sKM} offen sc1")
            a("s_mov_b64 exec, -1")
        def m_addr():
            a(f"v_subrev_u32 v15, {TBUF + 1152*w}, v{vTW}")
            a(f"v_lshrrev_b32 v15, 1, v15")
        run(18, {
            0: [cv(ACCQ+3, ACCQ), cv(ACCQ+6, ACCQ+4), D(f"ds_write_b64 v{vQW}, v[{ACCQ+2}:{ACCQ+3}]")],
            1: [cv(ACCQ+7, ACCQ+4), D(f"ds_write_b64 v{vQW}, v[{ACCQ+6}:{ACCQ+7}] offset:{16*QKS}", 'qw')],
            2: [pk(ACCK, ACCK+2), pk(ACCK+4, ACCK+6)],
            3: [cv(ACCK+2, ACCK), cv(ACCK+3, ACCK)],
            4: [cv(ACCK+6, ACCK+4), D(f"ds_write_b64 v{vQW}, v[{ACCK+2}:{ACCK+3}] offset:{QKB}")],
            5: [cv(ACCK+7, ACCK+4), D(f"ds_write_b64 v{vQW}, v[{ACCK+6}:{ACCK+7}] offset:{QKB + 16*QKS}", 'kw')],
            6: [W('qw'), D(f"ds_read_b64_tr_b16 v[{SP}:{SP+1}], v{vOWN} offset:{QBUF}"),
                D(f"ds_read_b64_tr_b16 v[{SP+2}:{SP+3}], v{vOWN} offset:{QBUF+4*QKS}", 'qr')],
            9: [W('kw'), D(f"ds_read_b64_tr_b16 v[{KO_}:{KO_+1}], v{vOWN} offset:{KBUF}"),
                D(f"ds_read_b64_tr_b16 v[{KO_+2}:{KO_+3}], v{vOWN} offset:{KBUF+4*QKS}", 'kr')],
            10: [t_mm0, I(f"v_mfma_f32_16x16x32_bf16 v[{ACCQ+4}:{ACCQ+7}], v[{KV+4}:{KV+7}], v[{SP}:{SP+3}], 0")],
            11: [v_ld0, m_addr],
            13: [m_mm,
                 I("s_mov_b32 exec_lo, 0x33333333"), I("s_mov_b32 exec_hi, 0x33333333"),
                 D(f"ds_write_b128 v{vTW}, v[{ACCQ}:{ACCQ+3}]"), D(f"ds_write_b128 v{vTW}, v[{ACCQ+4}:{ACCQ+7}] offset:512", 'tw'),
                 I("s_mov_b64 exec, -1")],
            14: [I(f"buffer_load_dwordx4 v[{KV+4}:{KV+7}], v{vLW}, s[8:11], s{sT0} offen offset:1024")],
            16: [I("s_mov_b32 exec_lo, 0x33333333"), I("s_mov_b32 exec_hi, 0x33333333"),
                 D(f"ds_write_b64 v15, v[{MD}:{MD+1}] offset:{QBUF + w*32*QKS}", 'mw2'), I("s_mov_b64 exec, -1")],
            17: [km_st],
        })
        if w == 0: a("; MARK Vend")
        AT(3, tag='qv', sfx=str(w))
        a(f"v_pk_add_f32 v[{AR[0]}:{AR[0]+1}], v[{VM}:{VM+1}], v[{VM+2}:{VM+3}]")
        a(f"v_pk_add_f32 v[{AR[0]+2}:{AR[0]+3}], v[{VM+4}:{VM+5}], v[{VM+6}:{VM+7}]")
        cv(VM, VM)()
        a(f"v_cvt_pk_bf16_f32 v{AR[2]}, v{AR[0]}, v{AR[0]+1}")
        a(f"v_cvt_pk_bf16_f32 v{AR[2]+1}, v{AR[0]+2}, v{AR[0]+3}")
        a(f"v_cvt_pk_bf16_f32 v{VM+1}, v{VM+2}, v{VM+3}")
        a(f"v_cvt_pk_bf16_f32 v{VM+2}, v{VM+4}, v{VM+5}")
        a(f"v_cvt_pk_bf16_f32 v{VM+3}, v{VM+6}, v{VM+7}")
        L.drain()
        if w < 3: a(f"s_branch {pfx}_bk")
    a.label(f"{pfx}_bk")
    L.reset()
    a("s_barrier")
    AT(3, tag='abs2'); AT(0, tag='abs3'); AT(5, tag='hop', step=31); AT(4, tag='qv')
    ST(4)
    a(f"s_cmp_eq_u32 s{sS}, {nsteps-1}")
    a(f"s_cbranch_scc1 {pfx}_last")
    SM = SP
    TA, TB = AR[0], AR[1]
    L.issue(f"ds_read_b128 v[{ACCQ}:{ACCQ+3}], v{vTRD}")
    t0 = L.issue(f"ds_read_b128 v[{TA}:{TA+3}], v{vTRD} offset:2304")
    L.issue(f"ds_read_b128 v[{ACCQ+4}:{ACCQ+7}], v{vTRD} offset:512")
    t1 = L.issue(f"ds_read_b128 v[{TB}:{TB+3}], v{vTRD} offset:2816")
    a(f"v_subrev_u32 v14, {TBUF}, v{vTW}")
    a(f"s_mul_i32 s{sT0}, s{sW}, 1152")
    a(f"v_subrev_u32 v14, s{sT0}, v14")
    a(f"v_lshrrev_b32 v14, 1, v14")
    a(f"v_and_b32 v15, 32, v{vL16}")
    a(f"v_mad_u32_u24 v14, v15, 40, v14")
    L.issue(f"ds_read_b64 v[{SM}:{SM+1}], v14 offset:{QBUF}")
    t2 = L.issue(f"ds_read_b64 v[{SM+2}:{SM+3}], v14 offset:{QBUF + 2*1280}")
    dpp = lambda r: a(f"v_add_f32_dpp v{r}, v{r}, v{r} quad_perm:[2,3,0,1] row_mask:0xf bank_mask:0xf")
    L.wait(t0)
    pk(ACCQ, TA)(); pk(ACCQ+2, TA+2)()
    L.wait(t1)
    pk(ACCQ+4, TB)(); pk(ACCQ+6, TB+2)()
    for r in range(4): dpp(ACCQ + r)
    L.wait(t2)
    pk(SM, SM+2)()
    for r in range(4, 8): dpp(ACCQ + r)
    dpp(SM); dpp(SM+1)
    MX, MT = 14, 15
    S.hi = None
    a(f"v_max3_f32 v{MX}, v{ACCQ}, v{ACCQ+1}, v{ACCQ+2}")
    a(f"v_max3_f32 v{MX}, v{MX}, v{ACCQ+3}, v{ACCQ+4}")
    a(f"v_max3_f32 v{MX}, v{MX}, v{ACCQ+5}, v{ACCQ+6}")
    a(f"v_max3_f32 v{MX}, v{MX}, v{ACCQ+7}, v{SM}")
    ONES, HALF = AR[0], AR[1]
    AT(1, tag='abs3'); AT(5, tag='qv')
    ST(5)
    a(f"v_max_f32 v{MX}, v{MX}, v{SM+1}")
    a(f"v_mov_b32 v{MT}, v{MX}")
    a(f"s_add_u32 s{sT1}, s{sKM}, {WS_VM - WS_KM}")
    a(f"v_lshrrev_b32 v{AR[2]+2}, 1, v{vT16}")
    AT(0, tag='ack')
    if 'nopub' not in opts: a(f"buffer_store_dwordx2 v[{AR[2]}:{AR[2]+1}], v{AR[2]+2}, s[8:11], s{sT1} offen sc1")
    if 'ack' in opts:
        a(f"s_cmp_eq_u32 s{sS}, 30"); a(f"s_cbranch_scc0 {pfx}_ackskip")
        a("s_waitcnt vmcnt(1)"); AT(1, tag='ack'); a("s_waitcnt vmcnt(0)"); AT(2, tag='ack')
        a.label(f"{pfx}_ackskip")
    a(f"v_permlane32_swap_b32 v{MX}, v{MT}")
    a(f"v_max_f32 v{MX}, v{MX}, v{MT}")
    a(f"v_mov_b32 v{MT}, v{MX}")
    for r in range(0, 4, 2): a(f"v_mov_b64 v[{ONES+r}:{ONES+r+1}], s[{sONE}:{sONE+1}]")
    a(f"v_permlane16_swap_b32 v{MX}, v{MT}")
    a(f"v_max_f32 v{MX}, v{MX}, v{MT}")
    a(f"v_mov_b64 v[{HALF}:{HALF+1}], s[{sHALF}:{sHALF+1}]")
    PT, PM = ACCK, ACCK + 4
    a(f"v_pk_add_f32 v[{SM}:{SM+1}], v[{SM}:{SM+1}], v[{MX}:{MX+1}] op_sel_hi:[1,0] neg_lo:[0,1] neg_hi:[0,1]")
    for r in range(0, 8, 2): a(f"v_pk_add_f32 v[{ACCQ+r}:{ACCQ+r+1}], v[{ACCQ+r}:{ACCQ+r+1}], v[{MX}:{MX+1}] op_sel_hi:[1,0] neg_lo:[0,1] neg_hi:[0,1]")
    for r in range(2): a(f"v_exp_f32 v{SM+r}, v{SM+r}")
    for i in range(4):
        a(f"v_exp_f32 v{ACCQ+2*i}, v{ACCQ+2*i}")
        a(f"v_exp_f32 v{ACCQ+2*i+1}, v{ACCQ+2*i+1}")
        if i == 0:
            a(f"v_cvt_pk_bf16_f32 v{PM}, v{SM}, v{SM+1}")
            a(f"v_cvt_pk_bf16_f32 v{PM+1}, v{SM}, v{SM+1}")
        else:
            a(f"v_cvt_pk_bf16_f32 v{PT+i-1}, v{ACCQ+2*i-2}, v{ACCQ+2*i-1}")
    O0, O1, LL = ACCQ, ACCQ + 4, SP
    a(f"v_mfma_f32_16x16x16_bf16 v[{LL}:{LL+3}], v[{PM}:{PM+1}], v[{HALF}:{HALF+1}], 0")
    a(f"v_cvt_pk_bf16_f32 v{PT+3}, v{ACCQ+6}, v{ACCQ+7}")
    AT(2, tag='abs3')
    if 'nowaitv' not in opts: a("s_waitcnt vmcnt(0)" if 'nopub' in opts else "s_waitcnt vmcnt(2)")
    AT(3, tag='abs3')
    a(f"v_mfma_f32_16x16x16_bf16 v[{O0}:{O0+3}], v[{PM}:{PM+1}], v[{VM}:{VM+1}], 0")
    a(f"v_mfma_f32_16x16x32_bf16 v[{LL}:{LL+3}], v[{PT}:{PT+3}], v[{ONES}:{ONES+3}], v[{LL}:{LL+3}]")
    a(f"v_mfma_f32_16x16x16_bf16 v[{O1}:{O1+3}], v[{PM}:{PM+1}], v[{VM+2}:{VM+3}], 0")
    a(f"v_mfma_f32_16x16x32_bf16 v[{O0}:{O0+3}], v[{PT}:{PT+3}], v[{KV}:{KV+3}], v[{O0}:{O0+3}]")
    a(f"v_mfma_f32_16x16x32_bf16 v[{O1}:{O1+3}], v[{PT}:{PT+3}], v[{KV+4}:{KV+7}], v[{O1}:{O1+3}]")
    for r in range(44, 68, 2): a(f"v_mov_b64 v[{r}:{r+1}], 0") if r not in () else None
    AT(4, tag='abs3')
    a(f"v_rcp_f32 v{LL}, v{LL}")
    a(f"v_rcp_f32 v{LL+1}, v{LL+1}")
    a(f"v_and_b32 v14, 0xf0, v{vL16}")
    a(f"v_lshrrev_b32 v14, 1, v14")
    a(f"v_and_b32 v15, 0x300, v{vL16}")
    a(f"v_or_b32 v15, v14, v15")
    a(f"v_pk_mul_f32 v[{O0}:{O0+1}], v[{O0}:{O0+1}], v[{LL}:{LL+1}]")
    a(f"v_pk_mul_f32 v[{O1}:{O1+1}], v[{O1}:{O1+1}], v[{LL}:{LL+1}]")
    a(f"v_cvt_pk_bf16_f32 v{SP+2}, v{O0}, v{O0+1}")
    L.issue(f"ds_write_b32 v{vOW}, v{SP+2}")
    a(f"v_cvt_pk_bf16_f32 v{SP+3}, v{O1}, v{O1+1}")
    ow = L.issue(f"ds_write_b32 v{vOW}, v{SP+3} offset:256")
    WA = 36
    for r in (36, 38, 40, 42, 68, 70): a(f"v_mov_b64 v[{r}:{r+1}], 0")
    L.wait(ow)
    a("s_barrier")
    AT(2); AT(5, tag='abs3'); AT(0, tag='hop')
    ST(6)
    OA = [AR[0], AR[1]]
    ot = []
    for kp in range(2):
        L.issue(f"ds_read_b64_tr_b16 v[{OA[kp]}:{OA[kp]+1}], v15 offset:{OBUF + kp*1024}")
        ot.append(L.issue(f"ds_read_b64_tr_b16 v[{OA[kp]+2}:{OA[kp]+3}], v15 offset:{OBUF + kp*1024 + 128}"))
    ldsf = [(j, kp) for j in range(9) for kp in range(2) if PL[('O', j, kp)][0] == 'l']
    bt = {}; nb = [0]
    S.hi = None
    def rdB():
        if nb[0] >= len(ldsf): return
        f = ldsf[nb[0]]; nb[0] += 1
        bt[f] = S.res_read(PL[('O',) + f][1])
    rdB()
    a(f"v_lshrrev_b32 v15, 2, v{vT16}")
    a(f"v_lshl_add_u32 v15, v15, 1, v15")
    a(f"s_add_u32 s{sH1o}, s{sH1base}, s{sH1}")
    L.issue(f"ds_read_b128 v[{SEL}:{SEL+3}], v{vTW} offset:0") if False else None
    def mm(j, kp):
        if j == 0: L.wait(ot[kp])
        Dd = f"v[{WA+4*j}:{WA+4*j+3}]"; A = f"v[{OA[kp]}:{OA[kp]+3}]"
        if (j, kp) in ldsf:
            L.wait(bt[(j, kp)])
            a(f"v_smfmac_f32_16x16x64_bf16 {Dd}, {A}, v[{LB}:{LB+7}], v{vIDX}")
            rdB()
        else:
            a(f"v_smfmac_f32_16x16x64_bf16 {Dd}, {A}, {bfrag(('O', j, kp))}, v{vIDX}")
    epi = deque()
    seq = [(j, kp) for j in range(9) for kp in range(2)]
    def push_epi(j):
        Xr = WA + 4*j; G = WA + 12*(j // 3)
        epi.append(I(f"v_pk_add_f32 v[{Xr}:{Xr+1}], v[{Xr}:{Xr+1}], v[{Xr+2}:{Xr+3}]"))
        def c():
            a(f"v_cvt_pk_bf16_f32 v{G + (j % 3)}, v{Xr}, v{Xr+1}")
            if j % 3 == 2:
                a(f"buffer_store_dwordx3 v[{G}:{G+2}], v15, s[8:11], s{sH1o} offen")
                if j < 8: a(f"s_add_u32 s{sH1o}, s{sH1o}, 3072")
        epi.append(c)
    for i, (j, kp) in enumerate(seq):
        mm(j, kp)
        if i >= 3 and (i - 3) % 2 == 0: push_epi((i - 3) // 2)
        if epi: epi.popleft()()
        if len(epi) > 2: epi.popleft()()
    push_epi(8)
    while epi: epi.popleft()()
    AT(3); AT(1, tag='hop'); AT(0, tag='h1')
    ST(7)
    RA = [16, 20, 28, 32]
    def side_traffic(job):
        n = 0
        advance(); kv_check("w" + str(int(job)))
        k_loads(); n += 2
        if job:
            a(f"v_mov_b32 v{SP}, -1")
            a(f"v_lshrrev_b32 v{SP+1}, 5, v{vL16}")
            a(f"v_mul_u32_u24 v{SP+1}, {PS}, v{SP+1}")
            a(f"v_and_b32 v{SP+2}, 16, v{vL16}")
            a(f"v_mul_u32_u24 v{SP+2}, 92, v{SP+2}")
            a(f"v_lshrrev_b32 v{SP+2}, 4, v{SP+2}")
            a(f"v_add_u32 v{SP+1}, v{SP+1}, v{SP+2}")
            a(f"s_add_u32 s{sR1}, s{sR0}, s{sSEG}")
            a(f"buffer_store_dword v{SP}, v{SP+1}, s[8:11], s{sR1} offen")
            a(f"buffer_store_dword v{SP}, v{vH2S}, s[8:11], s{sH2Z} offen"); n += 2
        return n
    a(f"s_cmp_eq_u32 s{sW}, 3")
    a(f"s_cbranch_scc1 {pfx}_w3tail")
    a(f"s_add_u32 s{sT0}, s{sH1}, {WS_H1}")
    a(f"s_add_u32 s{sT1}, s{sT0}, {8*PS}")
    a(f"s_add_u32 s{sT2}, s{sT0}, {16*PS}")
    a(f"s_add_u32 s{sT3}, s{sT0}, {24*PS}")
    a(f"s_mov_b32 s{sPOLL}, 0")
    a(f"v_and_b32 v14, 0xf0, v{vL16}")
    a(f"ds_read_b128 v[{SEL}:{SEL+3}], v14 offset:{SELB}")
    for jj in range(4): a(f"v_mov_b32 v{RA[jj]+3}, 0")
    d1 = O.get('d1', 0); dw = O.get('dw', 40)
    delay(d1)
    if dw:
        a(f"s_cmp_eq_u32 s{sW}, 0"); a(f"s_cbranch_scc1 {pfx}_h1first")
        delay(dw)
        a(f"s_cmp_eq_u32 s{sW}, 1"); a(f"s_cbranch_scc1 {pfx}_h1first")
        delay(dw)
    a.label(f"{pfx}_h1first")
    AT(1, tag='h1')
    HS = (sT0, sT1, sT2, sT3)
    for jj, s in enumerate(HS):
        a(f"buffer_load_dwordx3 v[{RA[jj]}:{RA[jj]+2}], v{vH1L}, s[8:11], s{s} offen sc1")
    AT(2, tag='h1')
    ny = side_traffic(True)
    for r in range(ACCQ + 4, ACCQ + 16, 2): a(f"v_mov_b64 v[{r}:{r+1}], 0")
    def reduce_check(ny):
        for jj in range(4):
            a(f"s_waitcnt vmcnt({ny + 3 - jj})")
            c = "0" if jj == 0 else "v[36:39]"
            a(f"v_mfma_f32_16x16x32_bf16 v[36:39], v[{RA[jj]}:{RA[jj]+3}], v[{SEL}:{SEL+3}], {c}")
        a(f"""
        s_nop 7
        v_pk_add_f32 v[36:37], v[36:37], v[38:39]
        v_cmp_u_f32 vcc, v36, v37
        v_cvt_pk_bf16_f32 v38, v36, v37
        """)
    a("s_waitcnt lgkmcnt(0)")
    reduce_check(ny)
    a(f"s_cbranch_vccz {pfx}_h1ok")
    a.label(f"{pfx}_h1poll")
    for jj, s in enumerate(HS):
        a(f"buffer_load_dwordx3 v[{RA[jj]}:{RA[jj]+2}], v{vH1L}, s[8:11], s{s} offen sc1")
    a(f"""
    s_add_u32 s{sPOLL}, s{sPOLL}, 1
    s_cmp_gt_u32 s{sPOLL}, {POLL_LIMIT}
    s_cbranch_scc1 {pfx}_timeout
    """)
    reduce_check(0)
    a(f"s_cbranch_vccnz {pfx}_h1poll")
    a.label(f"{pfx}_h1ok")
    if 'cnt' in opts: a(f"s_add_u32 s84, s84, s{sPOLL}")
    a(f"buffer_store_dword v38, v{vH2S}, s[8:11], s{sH2S} offen")
    AT(3, (7, sPOLL), tag='hop', step=31); AT(5, (7, sPOLL), tag='h1', step=31)
    if debug:
        a(f"s_mul_i32 s{sDBG}, s{sS}, 9216")
        a(f"s_add_u32 s{sDBG}, s{sDBG}, {WS_DBG}")
        a(f"buffer_store_dword v38, v{vH2S}, s[8:11], s{sDBG} offen")
    a(f"v_mov_b64 v[36:37], 0"); a(f"v_mov_b64 v[38:39], 0")
    trace(a, f"{pfx}_step", "s89", f"s{sS}", vt=14)
    a(f"s_branch {LOOP}")
    a.label(f"{pfx}_w3tail")
    side_traffic(False)
    for r in range(ACCQ, ACCQ + 16, 2): a(f"v_mov_b64 v[{r}:{r+1}], 0")
    a(f"s_branch {LOOP}")
    a.label(f"{pfx}_last")
    a(f"s_add_u32 s{sT1}, s{sKM}, {WS_VM - WS_KM}")
    a(f"v_lshrrev_b32 v{AR[2]+2}, 1, v{vT16}")
    a(f"buffer_store_dwordx2 v[{AR[2]}:{AR[2]+1}], v{AR[2]+2}, s[8:11], s{sT1} offen sc1")
    a(f"s_branch {pfx}_finish")
    a.label(f"{pfx}_timeout")
    a(f"s_mov_b32 s{sERR}, 1")
    a.label(f"{pfx}_finish")
    if stamp:
        a("s_memtime s[80:81]"); a("s_waitcnt lgkmcnt(0)"); a("s_sub_u32 s93, s80, s97")
        if 'abs' in opts or 'abs2' in opts or 'abs3' in opts or 'hop' in opts or 'qv' in opts or 'h1' in opts or 'ack' in opts: a("s_mov_b32 s90, s93")
        a(f"s_lshl_b32 s{sT0}, {s_h}, 2"); a(f"s_add_u32 s{sT0}, s{sT0}, s{sW}"); a(f"s_lshl_b32 s{sT0}, s{sT0}, 6"); a(f"s_add_u32 s{sT0}, s{sT0}, {WS_DBG + 0x100000}")
        for i in range(10):
            a(f"v_mov_b32 v16, s{84+i}"); a(f"v_mov_b32 v17, {4*i}")
            a(f"buffer_store_dword v16, v17, s[8:11], s{sT0} offen")
    a(f"""
    s_waitcnt vmcnt(0)
    s_barrier
    s_cmp_eq_u32 s{sW}, 3
    s_cbranch_scc0 {pfx}_exit
    s_add_u32 s{sT1}, s{sS}, 1
    s_cmp_eq_u32 s{sERR}, 0
    s_cselect_b32 s{sT1}, s{sT1}, 0x7fffffff
    v_mov_b32 v16, s{sT1}
    v_mov_b32 v17, 0
    s_add_u32 s{sT0}, s{sFLG}, {3*4096}
    buffer_store_dword v16, v17, s[8:11], s{sT0} offen sc1
    s_waitcnt vmcnt(0)
    """)
    a.label(f"{pfx}_exit")
```

```python
from common import *
import r_rec
import sys

def k_rec(debug=True, stamp=False, opts=()):
    a = Asm()
    a("s_cmp_ge_u32 s2, 256"); a("s_cbranch_scc1 rec_end")
    xcc_ticket(a, "rec", "s48", "s49")
    a("s_memrealtime s[72:73]")
    a("s_cmp_eq_u32 s48, 0"); a("s_cbranch_scc0 rec_end")
    a("s_cmp_ge_u32 s49, 32"); a("s_cbranch_scc1 rec_end")
    srd(a, 8, "ws"); srd(a, 4, "mem0")
    for i, k in enumerate(("wq", "wk", "wv", "wo")):
        a(f"s_load_dwordx2 s[{40+2*i}:{41+2*i}], s[0:1], {KA[k]}")
    a("s_waitcnt lgkmcnt(0)")
    srd_fin(a, 8, "ws"); srd_fin(a, 4, "mem0")
    a("v_lshrrev_b32 v2, 6, v0"); a("s_nop 0"); a("v_readfirstlane_b32 s22, v2")
    r_rec.rec_setup(a, "rec", "s49")
    r_rec.rec_reset_rings(a, "rec")
    r_rec.rec_preload(a, "rec", "s49")
    r_rec.rec_setup(a, "rec2", "s49")
    r_rec.rec_mem0(a, 'rec')
    r_rec.rec_steps(a, "rec", "s49", debug=debug, stamp=stamp, opts=opts)
    a.label("rec_end"); a("s_endpgm")
    return kernel_head("rec_kernel") + fix_hazards(a.lines, True) + kernel_desc("rec_kernel")

def parse_stamp(argv):
    for x in argv:
        if x == 'stamp': return True
        if x.startswith('st='): return [-1] + [int(v) for v in x[3:].split(',') if v != '']
    return False
if __name__ == "__main__":
    import build_dev4 as b4
    hdr = """; @launch kernel=zero_kernel grid=(1,1,1) block=(256,1,1) lds=1024
; @launch kernel=ln1_kernel grid=(64,1,1) block=(256,1,1) lds=2048
; @launch kernel=proj_kernel grid=(96,1,1) block=(256,1,1) lds=163840
; @launch kernel=rec_kernel grid=(256,1,1) block=(256,1,1) lds=163840
.amdgcn_target "amdgcn-amd-amdhsa--gfx950"
.text
"""
    open(sys.argv[1], "w").write(hdr + b4.wrap("zero", b4.k_zero, 1) + b4.wrap("ln1", b4.k_ln1, 64) + b4.wrap("proj", b4.k_proj, 96) + k_rec(debug=('nodbg' not in sys.argv), stamp=parse_stamp(sys.argv), opts=sys.argv[2:]))
```
